```python
import torch

def _softmax(x, axis=-1):
    return torch.softmax(x, dim=axis)
def _gelu(x):
    return torch.nn.functional.gelu(x, approximate="tanh")
def _silu(x):
    return torch.nn.functional.silu(x)
def _sigmoid(x):
    return torch.sigmoid(x)
def _layernorm(x, axis=-1, eps=1e-5):
    m = x.mean(dim=axis, keepdim=True)
    v = x.var(dim=axis, keepdim=True, unbiased=False)
    return (x - m) / torch.sqrt(v + eps)
def _scatter_add(tgt, idx, src, axis=0):
    return tgt.clone().index_add_(axis, idx, src)
def _segment_sum(src, seg, n):
    out = torch.zeros((n,) + src.shape[1:], dtype=src.dtype)
    return out.index_add_(0, seg, src)
def _pad(x, pw):
    flat = tuple(v for pair in reversed(pw) for v in pair)
    return torch.nn.functional.pad(x, flat)

kernel_name = 'concat_heads__gqa_block_cached__gqa_block_cached__near_ridge'

def setup_inputs():

    _w = (lambda a: (lambda t: t.to(torch.bfloat16) if t.is_floating_point() else t)(torch.as_tensor(a)))
    def _A_setup():
        B, Sq, D = 16, 96, 640
        Hq, Hkv, Sk, Dh = 32, 32, 512, 128
        assert Hq % Hkv == 0, (Hq, Hkv)
        return {
            "x": _w((lambda *s: torch.randn(*s, dtype=torch.bfloat16) * 0.8)(B, Sq, D)),
            "k_cache": _w((lambda *s: torch.randn(*s, dtype=torch.bfloat16) * 0.8)(B, Hkv, Sk, Dh)),
            "v_cache": _w((lambda *s: torch.randn(*s, dtype=torch.bfloat16) * 0.05)(B, Hkv, Sk, Dh)),
            "wq": _w((lambda *s: torch.randn(*s, dtype=torch.bfloat16) * 0.8)(D, Hq * Dh) * (D ** -0.5)),
            "wo": _w((lambda *s: torch.randn(*s, dtype=torch.bfloat16) * 0.05)(Hq * Dh, D) * ((Hq * Dh) ** -0.5)),
        }
    _A_in = _A_setup()

    def _B_setup():
        B, Sq, D = 16, 96, 640
        Hq, Hkv, Sk, Dh = 32, 32, 512, 128
        assert Hq % Hkv == 0, (Hq, Hkv)
        return {
            "x": _w((lambda *s: torch.randn(*s, dtype=torch.bfloat16) * 0.8)(B, Sq, D)),
            "k_cache": _w((lambda *s: torch.randn(*s, dtype=torch.bfloat16) * 0.8)(B, Hkv, Sk, Dh)),
            "v_cache": _w((lambda *s: torch.randn(*s, dtype=torch.bfloat16) * 0.05)(B, Hkv, Sk, Dh)),
            "wq": _w((lambda *s: torch.randn(*s, dtype=torch.bfloat16) * 0.8)(D, Hq * Dh) * (D ** -0.5)),
            "wo": _w((lambda *s: torch.randn(*s, dtype=torch.bfloat16) * 0.05)(Hq * Dh, D) * ((Hq * Dh) ** -0.5)),
        }
    _B_in = _B_setup()

    return {
        "A_x": _A_in["x"],
        "A_k_cache": _A_in["k_cache"],
        "A_v_cache": _A_in["v_cache"],
        "A_wq": _A_in["wq"],
        "A_wo": _A_in["wo"],
        "B_x": _B_in["x"],
        "B_k_cache": _B_in["k_cache"],
        "B_v_cache": _B_in["v_cache"],
        "B_wq": _B_in["wq"],
        "B_wo": _B_in["wo"],
    }

def reference(A_x, A_k_cache, A_v_cache, A_wq, A_wo, B_x, B_k_cache, B_v_cache, B_wq, B_wo):
    def _A_ref(x, k_cache, v_cache, wq, wo):
        B, Sq, D = x.shape
        Hq, Dh = 32, 128
        Hkv = k_cache.shape[1]
        rep = Hq // Hkv
        q = (lambda x, *d: x.permute(*d))((x @ wq).reshape(B, Sq, Hq, Dh), 0, 2, 1, 3)
        k = (lambda x, n, axis: torch.repeat_interleave(x, n, dim=axis))(k_cache, rep, axis=1)
        v = (lambda x, n, axis: torch.repeat_interleave(x, n, dim=axis))(v_cache, rep, axis=1)
        scores = torch.einsum("bhqd,bhkd->bhqk", q, k) * (Dh ** -0.5)
        p = _softmax(scores, axis=-1)
        o = torch.einsum("bhqk,bhkd->bhqd", p, v)
        return (lambda x, *d: x.permute(*d))(o, 0, 2, 1, 3).reshape(B, Sq, Hq * Dh) @ wo

    def _B_ref(x, k_cache, v_cache, wq, wo):
        B, Sq, D = x.shape
        Hq, Dh = 32, 128
        Hkv = k_cache.shape[1]
        rep = Hq // Hkv
        q = (lambda x, *d: x.permute(*d))((x @ wq).reshape(B, Sq, Hq, Dh), 0, 2, 1, 3)
        k = (lambda x, n, axis: torch.repeat_interleave(x, n, dim=axis))(k_cache, rep, axis=1)
        v = (lambda x, n, axis: torch.repeat_interleave(x, n, dim=axis))(v_cache, rep, axis=1)
        scores = torch.einsum("bhqd,bhkd->bhqk", q, k) * (Dh ** -0.5)
        p = _softmax(scores, axis=-1)
        o = torch.einsum("bhqk,bhkd->bhqd", p, v)
        return (lambda x, *d: x.permute(*d))(o, 0, 2, 1, 3).reshape(B, Sq, Hq * Dh) @ wo

    a = _A_ref(A_x, A_k_cache, A_v_cache, A_wq, A_wo)
    b = _B_ref(B_x, B_k_cache, B_v_cache, B_wq, B_wo)
    return torch.concatenate([a, b], axis=-1)
```

```python
NAME = "concat_heads__gqa_block_cached__gqa_block_cached__near_ridge"

class Asm:
    def __init__(self):
        self.lines = []
    def __call__(self, s):
        for l in s.strip("\n").split("\n"):
            self.lines.append("    " + l.strip() if not l.strip().endswith(":") else l.strip())
    def label(self, n):
        self.lines.append(n + ":")
    def c(self, s):
        self.lines.append("    ; " + s)
    def text(self):
        return "\n".join(self.lines) + "\n"

def kernel_block(name, vgpr=512, accum=256, sgpr=102):
    return f""".section .rodata,"a"
.p2align 6
.amdhsa_kernel {name}
  .amdhsa_next_free_vgpr {vgpr}
  .amdhsa_next_free_sgpr {sgpr}
  .amdhsa_accum_offset {accum}
  .amdhsa_group_segment_fixed_size 0
  .amdhsa_kernarg_size 104
  .amdhsa_user_sgpr_count 2
  .amdhsa_user_sgpr_kernarg_segment_ptr 1
  .amdhsa_system_sgpr_workgroup_id_x 1
.end_amdhsa_kernel
"""

def kernel_head(name):
    return f""".text
.globl {name}
.p2align 8
.type {name},@function
{name}:
"""

def single_file(body, grid, block, lds, vgpr=512, accum=256):
    k = NAME + "_kernel"
    s = f"; @launch grid=({grid},1,1) block=({block},1,1) lds={lds}\n"
    s += '.amdgcn_target "amdgcn-amd-amdhsa--gfx950"\n'
    s += kernel_head(k) + body + kernel_block(k, vgpr, accum)
    return s
```

```python
import re

def _regs(tok):
    tok = tok.strip()
    if tok.startswith('-'): tok = tok[1:]
    if tok.startswith('|') and tok.endswith('|'): tok = tok[1:-1]
    m = re.fullmatch(r'([vas])(\d+)', tok)
    if m: return {(m.group(1), int(m.group(2)))}
    m = re.fullmatch(r'([vas])\[(\d+):(\d+)\]', tok)
    if m: return {(m.group(1), i) for i in range(int(m.group(2)), int(m.group(3)) + 1)}
    if tok in ('vcc', 'vcc_lo', 'vcc_hi'): return {('x', 'vcc')}
    if tok == 'm0': return {('x', 'm0')}
    if tok in ('exec', 'exec_lo', 'exec_hi'): return {('x', 'exec')}
    return set()

TRANS = ('v_exp_f32', 'v_rcp_f32', 'v_log_f32', 'v_rsq_f32', 'v_sqrt_f32')

class I:
    __slots__ = ('t', 'op', 'k', 'rd', 'wr', 'srcC', 'srcAB', 'ws', 'data')
    def __init__(self, t):
        self.t = t
        t0 = t.split(';')[0].strip()
        self.rd = set(); self.wr = set(); self.srcC = set(); self.srcAB = set(); self.data = set()
        self.ws = 1
        if t0.endswith(':') or t0 == '' or t0.startswith('.'):
            self.op = ''; self.k = 'label' if t0.endswith(':') else 'none'; self.ws = 0; return
        parts = t0.split(None, 1)
        op = parts[0]; self.op = op
        ops = []
        if len(parts) > 1:
            for x in parts[1].split(','):
                ops.append(x.strip().split()[0] if x.strip() else '')
        R = [_regs(o) for o in ops]
        U = lambda l: set().union(*l) if l else set()
        if op.startswith('v_mfma'):
            self.k = 'mfma'; self.wr = R[0]; self.srcAB = R[1] | R[2]; self.srcC = R[3]; self.rd = R[1] | R[2] | R[3]
        elif op.startswith('ds_read'):
            self.k = 'dsr'; self.wr = R[0]; self.rd = R[1]
        elif op.startswith('ds_write'):
            self.k = 'dsw'; self.rd = U(R)
        elif op.startswith('buffer_load') or op.startswith('global_load'):
            if ' lds' in t0:
                self.k = 'dma'; self.rd = U(R) | {('x', 'm0')}
            else:
                self.k = 'vld'; self.wr = R[0]; self.rd = U(R[1:])
        elif op.startswith('buffer_store'):
            self.k = 'vst'; self.rd = U(R); self.data = R[0] if ('x4' in op or 'x3' in op) else set()
        elif op.startswith('global_store'):
            self.k = 'vst'; self.rd = U(R); self.data = R[1] if ('x4' in op or 'x3' in op) else set()
        elif op.startswith('buffer_atomic') or op.startswith('global_atomic'):
            self.k = 'vst'; self.rd = U(R)
            if ' sc0' in t0: self.wr = R[0]
        elif op.startswith('buffer_') :
            self.k = 'vst'
        elif op.startswith('v_permlane'):
            self.k = 'perm'; self.wr = R[0] | R[1]; self.rd = R[0] | R[1]
        elif op.startswith('v_readfirstlane') or op.startswith('v_readlane'):
            self.k = 'rdl'; self.wr = R[0]; self.rd = U(R[1:])
        elif op.startswith('v_'):
            self.k = 'trans' if op.replace('_e32', '').replace('_e64', '') in TRANS else 'valu'
            self.wr = R[0]; self.rd = U(R[1:])
            if op.startswith('v_fmac') or op.startswith('v_mac'): self.rd |= R[0]
            if op.startswith('v_cndmask') and len(R) == 3: self.rd |= {('x', 'vcc')}
            if op.startswith('v_add_co') or op.startswith('v_addc_co'): self.wr |= R[1]
        elif op == 's_nop':
            self.k = 'nop'; self.ws = int(ops[0], 0) + 1
        elif op == 's_waitcnt':
            self.k = 'wait'
        elif op == 's_barrier':
            self.k = 'bar'
        elif op.startswith('s_cbranch') or op in ('s_branch', 's_setpc_b64', 's_swappc_b64', 's_endpgm'):
            self.k = 'br'
        elif op.startswith('s_load') or op.startswith('s_memrealtime') or op.startswith('s_memtime'):
            self.k = 'smem'; self.wr = R[0]; self.rd = U(R[1:])
        elif op.startswith('s_cmp') or op.startswith('s_setprio') or op.startswith('s_bitcmp'):
            self.k = 'salu'; self.rd = U(R)
        elif op.startswith('s_'):
            self.k = 'salu'; self.wr = R[0]; self.rd = U(R[1:])
        else:
            raise ValueError('unknown instr ' + t)

VALUK = ('valu', 'trans', 'perm', 'rdl')

def need(p, c):
    n = 0
    if p.k in VALUK:
        vw = {r for r in p.wr if r[0] in 'va'}
        sw = {r for r in p.wr if r[0] == 's' or r == ('x', 'vcc')}
        if c.k == 'mfma' and vw & c.rd: n = max(n, 2)
        if c.k == 'perm' and vw & c.rd: n = max(n, 2)
        if c.k == 'rdl' and vw & c.rd: n = max(n, 1)
        if p.k == 'trans' and c.k in ('valu', 'perm', 'rdl') and vw & c.rd: n = max(n, 1)
        if sw:
            if c.k in VALUK and sw & c.rd: n = max(n, 2)
            if c.k in ('dma', 'vld', 'vst') and sw & c.rd: n = max(n, 5)
    if p.k == 'mfma':
        if c.k in VALUK and (p.wr & (c.rd | c.wr)): n = max(n, 12)
        if c.k in ('dsr', 'dsw', 'dma', 'vld', 'vst') and (p.wr & (c.rd | c.wr)): n = max(n, 12)
        if c.k == 'mfma':
            if p.wr & c.srcAB: n = max(n, 12)
            if p.wr & c.srcC and p.wr != c.srcC: n = max(n, 10)
            if p.wr & c.wr and not c.srcC and False: pass
        if c.k in VALUK and (p.srcC & c.wr): n = max(n, 7)
    if p.k == 'salu' and ('x', 'm0') in p.wr and c.k == 'dma': n = max(n, 1)
    if p.k == 'vst' and p.data and (p.data & c.wr): n = max(n, 2)
    return n

class Prog:
    def __init__(self):
        self.ins = []
    def __call__(self, s):
        for l in s.strip('\n').split('\n'):
            l = l.strip()
            if l: self.ins.append(I(l))
    def label(self, n): self.ins.append(I(n + ':'))
    def c(self, s): self.ins.append(I('; ' + s))

    def finalize(self, verbose=False):
        out = []
        q = []
        nn = 0
        for ins in self.ins:
            if ins.k in ('label', 'none'):
                out.append(ins); continue
            if ins.k == 'wait':
                m = re.search(r'lgkmcnt\((\d+)\)', ins.t)
                if m:
                    n = int(m.group(1))
                    if n < len(q): q = q[len(q) - n:] if n else []
                out.append(ins); continue
            touch = ins.rd | ins.wr
            last = -1
            for i, d in enumerate(q):
                if d & touch: last = i
            if last >= 0:
                n = min(len(q) - 1 - last, 15)
                out.append(I(f's_waitcnt lgkmcnt({n})'))
                q = q[len(q) - n:] if n else []
            dist = 0; pad = 0
            for p in reversed(out):
                if p.ws == 0: continue
                r = need(p, ins)
                if r > dist: pad = max(pad, r - dist)
                dist += p.ws
                if dist >= 12: break
            while pad > 0:
                k = min(pad, 8)
                out.append(I(f's_nop {k-1}')); pad -= k; nn += 1
            out.append(ins)
            if ins.k == 'dsr': q.append(set(ins.wr))
            elif ins.k == 'dsw': q.append(set())
            elif ins.k == 'smem': pass
            if ins.k == 'bar' and q and verbose: print('warning: barrier with outstanding DS ops', len(q))
        self.nops = nn
        return out

    def text(self, verbose=False):
        o = self.finalize(verbose)
        return '\n'.join((i.t if i.k == 'label' else '    ' + i.t) for i in o) + '\n'
```

```python
import sys, struct, math
from asmlib import *
from prog import Prog

def f32(x): return "0x%08x" % struct.unpack("<I", struct.pack("<f", x))[0]
C = (128 ** -0.5) * math.log2(math.e)
THR = 8.0 / C
WS = 293339136

KVS = 17024; VOFF = 8320
WO0 = 68096; WOS = 21760
OBUF = 111616; QBUF = 136192; SPARE = 160768
XSLOT = [24960, 51072, 0]
RING = 76032; RINGW = 4 * 4352
QT0 = 51072

def vr(b, n=4): return f"v[{b}:{b+n-1}]"
def ar(b, n=16): return f"a[{b}:{b+n-1}]"

class VM:
    def __init__(self, p): self.p = p; self.q = []
    def issue(self, tag): self.q.append(tag)
    def wait(self, *tags):
        last = -1
        for i, t in enumerate(self.q):
            if t in tags: last = i
        if last < 0: return
        n = len(self.q) - 1 - last
        assert n <= 63
        self.p(f"s_waitcnt vmcnt({n})")
        self.q = self.q[last + 1:]
    def cap(self, more):
        if len(self.q) + more > 63:
            n = 63 - more
            self.p(f"s_waitcnt vmcnt({n})")
            self.q = self.q[len(self.q) - n:]

def stamp(p, j, cfg):
    if cfg.get("stamps"): p(f"s_memrealtime s[{84+2*j}:{85+2*j}]")

def setup(p, cfg):
    p("""
    s_cmp_ge_u32 s2, 256
    s_cbranch_scc1 L_exit
    """)
    stamp(p, 0, cfg)
    p("""
    s_load_dwordx16 s[36:51], s[0:1], 0
    s_load_dwordx4 s[52:55], s[0:1], 64
    s_load_dwordx2 s[56:57], s[0:1], 96
    v_lshrrev_b32 v1, 6, v0
    v_and_b32 v7, 63, v0
    v_readfirstlane_b32 s3, v1
    s_and_b32 s4, s2, 7
    s_lshr_b32 s5, s2, 3
    s_lshr_b32 s6, s5, 4
    s_lshl_b32 s4, s4, 1
    s_add_u32 s4, s4, s6
    s_and_b32 s5, s5, 15
    s_lshr_b32 s6, s4, 3
    s_and_b32 s4, s4, 7
    """)
    p("""
    v_lshlrev_b32 v0, 4, v7
    v_lshrrev_b32 v8, 4, v7
    v_and_b32 v9, 15, v7
    v_lshrrev_b32 v10, 1, v8
    v_lshlrev_b32 v10, 3, v10
    v_xor_b32 v10, v10, v9
    v_lshlrev_b32 v10, 4, v10
    v_lshlrev_b32 v6, 8, v8
    v_add_u32 v6, v6, v10
    v_mul_u32_u24 v4, 1280, v8
    v_add_u32 v4, v4, v10
    v_lshlrev_b32 v5, 15, v8
    v_lshlrev_b32 v9, 4, v9
    v_add_u32 v5, v5, v9
    s_lshl_b32 s32, s3, 8
    v_add_u32 v5, s32, v5
    """)
    p("""
    s_and_b32 s32, s4, 1
    s_mul_i32 s32, s32, 3
    s_add_u32 s32, s32, s5
    s_mul_i32 s33, s32, 52
    s_lshr_b32 s33, s33, 8
    s_mul_i32 s33, s33, 5
    s_sub_u32 s32, s32, s33
    s_mul_i32 s34, s3, 30720
    """)
    for it in range(5):
        p(f"""
        s_lshl_b32 s{60+it}, s32, 20
        s_lshl_b32 s33, s32, 8
        s_add_u32 s{65+it}, s33, s34
        s_add_u32 s32, s32, 1
        s_cmp_eq_u32 s32, 5
        s_cselect_b32 s32, 0, s32
        """)
    p(f"""
    s_mul_i32 s70, s3, 6240
    s_mul_i32 s71, s3, {RINGW}
    s_add_u32 s71, s71, {RING}
    s_mul_i32 s72, s3, 2080
    s_mul_i32 s73, s3, 2176
    s_lshl_b32 s74, s3, 11
    s_mov_b32 s76, {f32(C)}
    s_waitcnt lgkmcnt(0)
    s_cmp_eq_u32 s6, 0
    s_cselect_b32 s16, s36, s46
    s_cselect_b32 s17, s37, s47
    s_cselect_b32 s20, s42, s52
    s_cselect_b32 s21, s43, s53
    s_cselect_b32 s8, s38, s48
    s_cselect_b32 s9, s39, s49
    s_cselect_b32 s12, s40, s50
    s_cselect_b32 s13, s41, s51
    s_cselect_b32 s24, s44, s54
    s_cselect_b32 s25, s45, s55
    s_mul_i32 s32, s5, 122880
    s_add_u32 s16, s16, s32
    s_addc_u32 s17, s17, 0
    s_mov_b32 s18, 122880
    s_mov_b32 s19, 0x20000
    s_lshl_b32 s32, s4, 10
    s_add_u32 s20, s20, s32
    s_addc_u32 s21, s21, 0
    s_sub_u32 s22, 5242880, s32
    s_mov_b32 s23, 0x20000
    """)

def setup2(p, cfg):
    p(f"""
    s_lshl_b32 s32, s5, 3
    s_add_u32 s32, s32, s4
    s_lshl_b32 s32, s32, 19
    s_add_u32 s8, s8, s32
    s_addc_u32 s9, s9, 0
    s_mov_b32 s10, 524288
    s_mov_b32 s11, 0x20000
    s_add_u32 s12, s12, s32
    s_addc_u32 s13, s13, 0
    s_mov_b32 s14, 524288
    s_mov_b32 s15, 0x20000
    s_mul_i32 s32, s4, 655360
    s_add_u32 s24, s24, s32
    s_addc_u32 s25, s25, 0
    s_mov_b32 s26, 655360
    s_mov_b32 s27, 0x20000
    s_lshl_b32 s32, s6, 4
    s_add_u32 s32, s32, s5
    s_lshl_b32 s32, s32, 3
    s_add_u32 s32, s32, s4
    s_mul_i32 s32, s32, 122880
    s_add_u32 s28, s56, s32
    s_addc_u32 s29, s57, 0
    s_mov_b32 s30, 122880
    s_mov_b32 s31, 0x20000
    """)
    kread(p, 1, 2, 8)
    p("""
    v_bfe_u32 v8, v7, 2, 2
    v_mul_u32_u24 v3, 1088, v8
    v_lshrrev_b32 v8, 5, v7
    v_lshlrev_b32 v8, 9, v8
    v_add_u32 v3, v3, v8
    v_bfe_u32 v8, v7, 4, 1
    v_lshlrev_b32 v8, 5, v8
    v_add_u32 v3, v3, v8
    v_and_b32 v8, 1, v7
    v_lshlrev_b32 v8, 4, v8
    v_add_u32 v3, v3, v8
    v_bfe_u32 v8, v7, 1, 1
    v_lshlrev_b32 v8, 3, v8
    v_add_u32 v3, v3, v8
    v_add_u32 v3, s71, v3
    """)

def kread(p, d0, d1, t):
    p(f"""
    v_bfe_u32 v{t}, v7, 3, 1
    v_lshlrev_b32 v{t}, 2, v{t}
    v_and_b32 v{t+1}, 3, v7
    v_add_u32 v{t}, v{t}, v{t+1}
    v_mul_u32_u24 v{d0}, 1040, v{t}
    v_bfe_u32 v{t}, v7, 2, 1
    v_lshlrev_b32 v{t}, 8, v{t}
    v_add_u32 v{d0}, v{d0}, v{t}
    v_lshrrev_b32 v{t}, 5, v7
    v_lshlrev_b32 v{t}, 4, v{t}
    v_add_u32 v{d0}, v{d0}, v{t}
    v_bfe_u32 v{t}, v7, 4, 1
    v_lshlrev_b32 v{t+1}, 9, v{t}
    v_add_u32 v{d0}, v{d0}, v{t+1}
    v_lshlrev_b32 v{t}, 7, v{t}
    v_sub_u32 v{d1}, v{d0}, v{t}
    v_add_u32 v{d0}, v{d0}, v{t}
    """)

def vread(p, d, t):
    p(f"""
    v_bfe_u32 v{t}, v7, 2, 2
    v_mul_u32_u24 v{d}, 1088, v{t}
    v_lshrrev_b32 v{t}, 5, v7
    v_lshlrev_b32 v{t}, 8, v{t}
    v_add_u32 v{d}, v{d}, v{t}
    v_bfe_u32 v{t}, v7, 4, 1
    v_lshlrev_b32 v{t}, 5, v{t}
    v_add_u32 v{d}, v{d}, v{t}
    v_and_b32 v{t}, 3, v7
    v_lshlrev_b32 v{t}, 3, v{t}
    v_add_u32 v{d}, v{d}, v{t}
    """)

def prologue(p, cfg):
    vm = VM(p)
    XP = cfg.get("xpol", " nt"); QP = cfg.get("qpol", " nt")
    def xdma(it):
        for i in range(6):
            p(f"s_add_u32 m0, s70, {XSLOT[it % 3] + i*1040}")
            p(f"s_add_u32 s75, s{65+it}, {i*5120}")
            p(f"buffer_load_dwordx4 v4, s[16:19], s75 offen{XP} lds")
            vm.issue(("x", it))
    def wqdma_list(n):
        if n >= 40: return []
        it, j = n // 8, n % 8
        out = []
        for q in range(4):
            out.append((f"s_add_u32 m0, s71, {(n % 4)*4352 + q*1088}\n"
                        f"s_add_u32 s75, s{60+it}, {(j*16+q)*8192}\n"
                        f"buffer_load_dwordx4 v5, s[20:23], s75 offen{QP} lds", ("wq", n)))
        return out
    def wqdma(n):
        for t, tag in wqdma_list(n):
            p(t); vm.issue(tag)
    def kvpart(T_k, T_v):
        for i in range(2):
            if T_k is not None:
                p(f"s_add_u32 m0, s72, {(T_k % 4)*KVS + i*1040}")
                p(f"s_add_u32 s75, s74, {T_k*8192 + i*1024}")
                p("buffer_load_dwordx4 v6, s[8:11], s75 offen nt lds"); vm.issue("kv")
            if T_v is not None:
                p(f"s_add_u32 m0, s73, {((T_v+1) % 4)*KVS + VOFF + i*1088}")
                p(f"s_add_u32 s75, s74, {T_v*8192 + i*1024}")
                p("buffer_load_dwordx4 v0, s[12:15], s75 offen nt lds"); vm.issue("kv")
    FS = [8, 36]
    def frag_reads(n):
        j = n % 8; b = FS[n % 2]
        out = []
        for qt in range(3):
            out.append(f"ds_read_b128 {vr(b+16+4*qt)}, v{1 if j < 4 else 2} offset:{qt*8320 + 32*j}")
        for dt in range(4):
            for jh in range(2):
                out.append(f"ds_read_b64_tr_b16 {vr(b+4*dt+2*jh, 2)}, v3 offset:{(n % 4)*4352 + jh*256 + dt*64}")
        o = [out[0], out[3], out[4], out[1], out[2]] + out[5:]
        return o
    xdma(0)
    for n in range(4): wqdma(n)
    xdma(1); xdma(2)
    setup2(p, cfg)
    p(f"v_add_u32 v1, {XSLOT[0]}, v1\nv_add_u32 v2, {XSLOT[0]}, v2")
    for i in range(256): p(f"v_accvgpr_write_b32 a{i}, 0")
    vm.wait(("x", 0), ("wq", 0))
    p("s_barrier")
    stamp(p, 1, cfg)
    for r in frag_reads(0): p(r)
    p("s_waitcnt lgkmcnt(0)")
    wqdma(4)
    for n in range(40):
        it, j = n // 8, n % 8
        b = FS[n % 2]
        fill = []
        if n < 39:
            if j == 7:
                vm.wait(("wq", n + 1), ("x", it + 1))
                p("s_barrier")
                d = (XSLOT[(it + 1) % 3] - XSLOT[it % 3]) & 0xffffffff
                p(f"v_add_u32 v1, {d}, v1\nv_add_u32 v2, {d}, v2")
            else:
                vm.wait(("wq", n + 1))
            fill = frag_reads(n + 1)
        mf = []
        for dt in range(4):
            for qt in range(3):
                acc = vr(64 + 16*(dt*3 + qt), 16)
                mf.append(f"v_mfma_f32_32x32x16_bf16 {acc}, {vr(b+4*dt)}, {vr(b+16+4*qt)}, {acc if n else 0}")
        k = 0
        for i, m in enumerate(mf):
            p(m)
            if i < 6:
                for _ in range(2):
                    if k < len(fill): p(fill[k]); k += 1
            if i == 5 and j == 7 and n < 39:
                if it == 0: xdma(3)
                elif it == 1: xdma(4)
                elif it == 2: kvpart(0, None)
                elif it == 3: kvpart(1, 0); kvpart(2, 1)
            if i == 7 and n < 39:
                p("s_waitcnt lgkmcnt(0)")
                wl = wqdma_list(n + 5)
            if i >= 8 and n < 39 and i - 8 < len(wl):
                p(wl[i - 8][0]); vm.issue(wl[i - 8][1])
    stamp(p, 2, cfg)
    p(f"""
    s_mul_i32 s32, s3, 24576
    s_mov_b32 s33, {QT0}
    s_cmp_lt_u32 s3, 2
    s_cselect_b32 s33, s33, {OBUF - 2*24576}
    s_add_u32 s32, s32, s33
    v_add_u32 v4, s32, v0
    """)
    for dt in range(4):
        for qt in range(3):
            a = 64 + 16*(dt*3 + qt)
            for i in range(8): p(f"v_cvt_pk_bf16_f32 v{a+i}, v{a+2*i}, v{a+2*i+1}")
    p("s_waitcnt vmcnt(0)\ns_barrier")
    for dt in range(4):
        for qt in range(3):
            a = 64 + 16*(dt*3 + qt)
            for h in range(2):
                p(f"ds_write_b128 v4, {vr(a+4*h)} offset:{qt*8192 + (2*dt+h)*1024}")
    p("s_waitcnt lgkmcnt(0)\ns_barrier")

vA0, vA1, vV, vW, vO, vM, vMc, vThr, vL0, vL1, vT = 1, 2, 3, 4, 5, 6, 8, 9, 10, 11, 12
OF = 16; PF = 20; F0 = 32; S0 = 96; QA = 128; QB = 160; OA = 192
CT_A = [list(range(0, 8)), list(range(10, 18))]

def softmax_list(S):
    L = []
    fma = lambda e: f"v_fma_f32 v{S+e}, v{S+e}, s76, v{vMc}"
    ex = lambda e: f"v_exp_f32 v{S+e}, v{S+e}"
    ad = lambda e: f"v_add_f32 v{vL0 + e % 2}, v{vL0 + e % 2}, v{S+e}"
    cv = lambda i: f"v_cvt_pk_bf16_f32 v{PF+i}, v{S+2*i}, v{S+2*i+1}"
    for e in range(3): L.append(fma(e))
    for e in range(16):
        L.append(ex(e))
        if e + 3 < 16: L.append(fma(e + 3))
        if e >= 2: L.append(ad(e - 2))
        if e >= 3 and e % 2 == 1: L.append(cv((e - 3) // 2))
    L += [ad(14), ad(15), cv(7)]
    return L

def tmax_list(S):
    L = [f"v_max3_f32 v{vT}, v{S}, v{S+1}, v{S+2}", f"v_max3_f32 v13, v{S+3}, v{S+4}, v{S+5}"]
    L += [f"v_max3_f32 v{vT}, v{vT}, v{S+6}, v{S+7}", f"v_max3_f32 v13, v13, v{S+8}, v{S+9}"]
    L += [f"v_max3_f32 v{vT}, v{vT}, v{S+10}, v{S+11}", f"v_max3_f32 v13, v13, v{S+12}, v{S+13}"]
    L += [f"v_max3_f32 v{vT}, v{vT}, v{S+14}, v{S+15}", f"v_max_f32 v{vT}, v{vT}, v13"]
    L += [f"v_cmp_gt_f32 vcc, v{vT}, v{vThr}"]
    return L

def wo_reads(ct, slot, dst):
    return [f"ds_read_b64_tr_b16 {vr(dst+2*jh, 2)}, v{vW} offset:{slot*WOS + (ct//4)*4352 + jh*512 + (ct % 4)*64}" for jh in range(2)]

def qk_mfmas(Sn):
    return [f"v_mfma_f32_32x32x16_bf16 {vr(Sn,16)}, {vr(F0+4*m)}, {vr(QA+4*m)}, {vr(Sn,16) if m else 0}" for m in range(8)]
def k_reads(slot):
    return [f"ds_read_b128 {vr(F0+4*m)}, v{vA0 if m < 4 else vA1} offset:{slot*KVS + 32*m}" for m in range(8)]

def halfstep(p, hs, oproj, tag, stubs):
    par = hs % 2; Sc = S0 + 16*par; Sn = S0 + 16*(1 - par)
    slot = (hs + 1) % 4; half = hs % 2; wslot = (hs // 2) % 2
    p("s_barrier")
    p(f"s_cbranch_vccnz L_rs_{tag}_{hs}")
    p.label(f"L_rr_{tag}_{hs}")
    stubs.append((f"L_rs_{tag}_{hs}", f"L_rr_{tag}_{hs}"))
    if hs == 3:
        p(f"s_cmp_eq_u32 s77, 3\ns_cbranch_scc1 L_qs_{tag}")
        p.label(f"L_qr_{tag}")
    for r in k_reads(slot): p(r)
    if oproj and half == 0:
        p(f"ds_read_b128 {vr(OF)}, v{vO} offset:{(hs // 2)*1024}")
    sm = softmax_list(Sc)
    vb = F0 if oproj else F0 + 32
    vreads = []
    for f in range(2):
        for dt in range(4):
            for jh in range(2):
                vreads.append(f"ds_read_b64_tr_b16 {vr(vb+4*(4*f+dt)+2*jh, 2)}, v{vV} offset:{slot*KVS + VOFF + jh*4352 + f*512 + dt*64}")
    pre = 20 if oproj else 24
    k = 0
    for _ in range(pre): p(sm[k]); k += 1
    r1 = []
    if oproj:
        for i, ct in enumerate(CT_A[half]): r1 += wo_reads(ct, wslot, F0 + 32 + 4*i)
    else:
        r1 = vreads
    per = 3 if oproj else 4
    for m, mf in enumerate(qk_mfmas(Sn)):
        p(mf)
        p(r1[2*m]); p(r1[2*m + 1])
        for _ in range(per):
            if k < len(sm): p(sm[k]); k += 1
    if oproj:
        for i in range(8):
            acc = ar(16*(8*half + i))
            p(f"v_mfma_f32_32x32x16_bf16 {acc}, {vr(F0+32+4*i)}, {vr(OF)}, {acc}")
            p(vreads[2*i]); p(vreads[2*i + 1])
            for _ in range(2):
                if k < len(sm): p(sm[k]); k += 1
    while k < len(sm): p(sm[k]); k += 1
    tm = tmax_list(Sn); k = 0
    for f in range(2):
        for dt in range(4):
            acc = vr(OA + 16*dt, 16)
            p(f"v_mfma_f32_32x32x16_bf16 {acc}, {vr(vb+4*(4*f+dt))}, {vr(PF+4*f)}, {acc}")
            if f == 1 or dt >= 2 or oproj:
                for _ in range(2):
                    if k < len(tm): p(tm[k]); k += 1
    while k < len(tm): p(tm[k]); k += 1

def rescale_stub(p, lab, ret):
    p.label(lab)
    p(f"""
    s_nop 7
    s_nop 7
    v_mov_b32 v13, v{vT}
    v_permlane32_swap_b32 v13, v{vT}
    v_max_f32 v13, v13, v{vT}
    v_max_f32 v13, v13, v{vM}
    v_sub_f32 v14, v{vM}, v13
    v_mul_f32 v14, s76, v14
    v_exp_f32 v14, v14
    v_mov_b32 v{vM}, v13
    v_mul_f32 v{vMc}, s76, v13
    v_sub_f32 v{vMc}, 0, v{vMc}
    v_add_f32 v{vThr}, {f32(THR)}, v13
    v_mul_f32 v{vL0}, v{vL0}, v14
    v_mul_f32 v{vL1}, v{vL1}, v14
    """)
    for i in range(64): p(f"v_mul_f32 v{OA+i}, v{OA+i}, v14")
    p(f"s_branch {ret}")

def round_end(p):
    p(f"""
    v_add_f32 v{vL0}, v{vL0}, v{vL1}
    v_mov_b32 v13, v{vL0}
    v_permlane32_swap_b32 v13, v{vL0}
    v_add_f32 v13, v13, v{vL0}
    v_rcp_f32 v13, v13
    v_add_u32 v{vO}, {(-8192) & 0xffffffff}, v{vO}
    v_mov_b32 v{vM}, {f32(-3e38)}
    """)
    for dt in range(4):
        t = F0 + 8*dt
        for i in range(16): p(f"v_mul_f32 v{OA+16*dt+i}, v{OA+16*dt+i}, v13")
        for i in range(8): p(f"v_cvt_pk_bf16_f32 v{t+i}, v{OA+16*dt+2*i}, v{OA+16*dt+2*i+1}")
        for a in range(2): p(f"ds_write_b128 v{vO}, {vr(t+4*a)} offset:{(2*dt+a)*1024}")
    p("s_mov_b64 vcc, -1\ns_waitcnt lgkmcnt(0)")

def attention(p, cfg):
    stubs = []
    p(f"""
    s_lshl_b32 s32, s3, 13
    v_add_u32 v{vO}, s32, v0
    """)
    for m in range(8): p(f"ds_read_b128 {vr(QA+4*m)}, v{vO} offset:{QT0 + m*1024}")
    p(f"v_add_u32 v13, {QT0 + 24576}, v{vO}")
    for m in range(8): p(f"ds_read_b128 {vr(QB+4*m)}, v13 offset:{m*1024}")
    kread(p, vA0, vA1, 14)
    vread(p, vV, 14)
    p(f"""
    v_add_u32 v{vW}, {WO0}, v{vV}
    v_add_u32 v{vO}, {OBUF}, v{vO}
    v_mov_b32 v{vM}, {f32(-3e38)}
    v_mov_b32 v{vL0}, 0
    v_mov_b32 v{vL1}, 0
    v_mov_b32 v{vThr}, 0
    """)
    for r in k_reads(0): p(r)
    for i in range(64): p(f"v_mov_b32 v{OA+i}, 0")
    p("s_waitcnt lgkmcnt(0)\ns_barrier")
    for mf in qk_mfmas(S0): p(mf)
    for t in tmax_list(S0): p(t)
    p("s_mov_b64 vcc, -1\ns_mov_b32 s77, 0\ns_mov_b32 s80, 0")
    stamp(p, 3, cfg)
    p.label("L_r0")
    for hs in range(4): halfstep(p, hs, False, "a", stubs)
    p(f"""
    v_add_u32 v{vO}, 2048, v{vO}
    s_add_u32 s77, s77, 1
    s_cmp_lt_u32 s77, 4
    s_cbranch_scc1 L_r0
    """)
    p.label("L_rend")
    round_end(p)
    p("""
    s_add_u32 s80, s80, 1
    s_mov_b32 s77, 0
    s_cmp_eq_u32 s80, 4
    s_cbranch_scc1 L_tail
    """)
    p.label("L_r1")
    for hs in range(4): halfstep(p, hs, True, "b", stubs)
    p(f"""
    v_add_u32 v{vO}, 2048, v{vO}
    s_add_u32 s77, s77, 1
    s_cmp_lt_u32 s77, 4
    s_cbranch_scc1 L_r1
    s_nop 7
    s_nop 3
    s_branch L_rend
    """)
    p.label("L_tail")
    stamp(p, 4, cfg)
    for ks in range(8):
        p("s_barrier")
        p(f"ds_read_b128 {vr(OF)}, v{vO} offset:{ks*1024}")
        cts = CT_A[0] + CT_A[1]
        rd = []
        for i, ct in enumerate(cts): rd.append(wo_reads(ct, ks % 2, F0 + 4*i))
        for i in range(4):
            for r in rd[i]: p(r)
        for i in range(16):
            acc = ar(16*i)
            p(f"v_mfma_f32_32x32x16_bf16 {acc}, {vr(F0+4*i)}, {vr(OF)}, {acc}")
            if i + 4 < 16:
                for r in rd[i + 4]: p(r)
    stamp(p, 5, cfg)
    p("s_mul_i32 s32, s3, 40960")
    store_tiles(p, [(16*i, ct*2048) for i, ct in enumerate(CT_A[0] + CT_A[1])], "s32", cfg)
    finish(p, cfg, 0)
    for lab, ret in stubs: rescale_stub(p, lab, ret)
    for tag in "ab":
        p.label(f"L_qs_{tag}")
        for i in range(32): p(f"v_mov_b32 v{QA+i}, v{QB+i}")
        d = (-6144) & 0xffffffff if tag == "a" else QBUF - OBUF - 6144
        p(f"v_add_u32 v13, {d}, v{vO}")
        for m in range(8): p(f"ds_read_b128 {vr(QB+4*m)}, v13 offset:{m*1024}")
        p("s_waitcnt lgkmcnt(0)")
        p(f"s_branch L_qr_{tag}")

def store_tiles(p, tiles, sbase, cfg):
    SP = cfg.get("spol", "")
    for n, (a, off) in enumerate(tiles):
        t = F0 + 16*(n % 4)
        for i in range(16): p(f"v_accvgpr_read_b32 v{t+i}, a{a+i}")
        for i in range(8): p(f"v_cvt_pk_bf16_f32 v{t+i}, v{t+2*i}, v{t+2*i+1}")
        p(f"s_add_u32 s75, {sbase}, {off}")
        p(f"buffer_store_dwordx4 {vr(t)}, v0, s[28:31], s75 offen{SP}")
        p(f"buffer_store_dwordx4 {vr(t+4)}, v0, s[28:31], s75 offen offset:1024{SP}")

def finish(p, cfg, w):
    if cfg.get("stamps") and w == cfg.get("stampwave", 0):
        n = 8
        p("s_waitcnt vmcnt(0)")
        stamp(p, 6, cfg)
        if w == 0: p("s_cmp_eq_u32 s3, 0\ns_cbranch_scc0 L_exit")
        p(f"""
        s_lshl_b32 s32, s2, 9
        s_add_u32 s56, s56, s32
        s_addc_u32 s57, s57, 0
        s_add_u32 s56, s56, {WS - 256*512}
        s_addc_u32 s57, s57, 0
        s_waitcnt lgkmcnt(0)
        v_mov_b32 v14, 0
        """)
        for j in range(7):
            p(f"v_mov_b32 v10, s{84+2*j}\nv_mov_b32 v11, s{85+2*j}\nglobal_store_dwordx2 v14, v[10:11], s[56:57] offset:{8*j}\ns_nop 1")
    p("s_endpgm")

CT_L = [[8, 9], [18, 19]]
def loader(p, cfg):
    WP = cfg.get("wpol", "")
    vm = VM(p)
    def kv_list(slot):
        L = []
        for q in range(8):
            L.append(f"s_mov_b32 m0, {slot*KVS + q*1040 - (q % 4)*1024}\ns_nop 0\nbuffer_load_dwordx4 v6, s[8:11], s{81 + q//4} offen offset:{(q % 4)*1024} nt lds")
        for q in range(8):
            L.append(f"s_mov_b32 m0, {slot*KVS + VOFF + q*1088 - (q % 4)*1024}\ns_nop 0\nbuffer_load_dwordx4 v0, s[12:15], s{78 + q//4} offen offset:{(q % 4)*1024} nt lds")
        return L
    kv_adv = "s_mov_b32 s78, s81\ns_mov_b32 s79, s82\ns_add_u32 s81, s81, 8192\ns_add_u32 s82, s82, 8192"
    def wo_list(slot):
        L = []
        for q in range(4):
            for blk in range(5):
                pre = f"s_add_u32 s75, s83, {q*1280}" if blk == 0 else "s_nop 0"
                L.append(f"s_mov_b32 m0, {WO0 + slot*WOS + blk*4352 + q*1088 - blk*256}\n{pre}\nbuffer_load_dwordx4 v5, s[24:27], s75 offen offset:{blk*256}{WP} lds")
        return L
    vread(p, vW, 14)
    p(f"""
    v_add_u32 v{vW}, {WO0}, v{vW}
    v_add_u32 v2, {OBUF}, v0
    v_lshrrev_b32 v8, 4, v7
    v_mul_u32_u24 v5, 5120, v8
    v_and_b32 v8, 15, v7
    v_lshlrev_b32 v8, 4, v8
    v_add_u32 v5, v5, v8
    s_mov_b32 s78, {2*8192}
    s_mov_b32 s79, {2*8192 + 4096}
    s_mov_b32 s81, {3*8192}
    s_mov_b32 s82, {3*8192 + 4096}
    s_mul_i32 s33, s5, 40960
    s_mov_b32 s83, 0
    s_barrier
    """)
    for t in kv_list(3): p(t); vm.issue(("kv", 2))
    p(kv_adv)
    wn = 0
    for T in range(16):
        vm.wait(("kv", T))
        p("s_barrier")
        if T % 2 == 0:
            if T == 14:
                for t in wo_list(0): p(t); vm.issue(("wo", 8))
                p("s_add_u32 s83, s83, 20480")
            elif cfg.get("warm", 1):
                for i in range(6):
                    if wn < 40:
                        p(f"s_mov_b32 m0, {SPARE}\ns_add_u32 s75, s33, {wn*1024}\nbuffer_load_dwordx4 v0, s[24:27], s75 offen{cfg.get('warmpol','')} lds")
                        vm.issue("warm"); wn += 1
        vm.cap(16)
        for t in kv_list((T + 4) % 4): p(t); vm.issue(("kv", T + 3))
        p(kv_adv)
    p("s_mov_b32 s77, 0\ns_mov_b32 s80, 0")
    def oproj3(half, wslot, ksoff, first):
        rd = []
        if half == 0:
            for qt in range(3): rd.append(f"ds_read_b128 {vr(16+4*qt)}, v2 offset:{qt*8192 + ksoff}")
        for i, ct in enumerate(CT_L[half]): rd += wo_reads(ct, wslot, 32 + 4*i)
        mf = []
        for i in range(2):
            for qt in range(3):
                acc = ar(16*((2*half + i)*3 + qt))
                mf.append(f"v_mfma_f32_32x32x16_bf16 {acc}, {vr(32+4*i)}, {vr(16+4*qt)}, {acc}")
        return rd, mf
    p.label("L_ld")
    for hs in range(4):
        p(f"s_waitcnt vmcnt({32 if hs % 2 == 0 else 52})")
        p("s_barrier")
        rd, mf = oproj3(hs % 2, hs // 2, (hs // 2)*1024, False)
        for r in rd: p(r)
        dl = []
        if hs % 2 == 0:
            dl += wo_list((hs // 2 + 1) % 2)
            dl[-1] += "\ns_add_u32 s83, s83, 20480\ns_waitcnt vmcnt(46)"
        dl += kv_list(hs % 4)
        k = 0
        step = len(dl) // 8
        for i, t in enumerate(dl):
            p(t)
            if i % step == step - 1 and i // step >= 2 and k < 6:
                p(mf[k]); k += 1
        while k < 6: p(mf[k]); k += 1
        p(kv_adv)
    p(f"""
    v_add_u32 v2, 2048, v2
    s_add_u32 s77, s77, 1
    s_and_b32 s32, s77, 3
    s_cmp_eq_u32 s32, 0
    s_cbranch_scc0 L_ld
    v_add_u32 v2, {(-8192) & 0xffffffff}, v2
    s_cmp_lt_u32 s77, 12
    s_cbranch_scc1 L_ld
    """)
    p("s_waitcnt vmcnt(32)")
    for ks in range(8):
        p("s_barrier")
        rd0, mf0 = oproj3(0, ks % 2, ks*1024, False)
        rd1, mf1 = oproj3(1, ks % 2, ks*1024, False)
        rd1 = [r.replace("v[32:33]", "v[40:41]").replace("v[34:35]", "v[42:43]").replace("v[36:37]", "v[44:45]").replace("v[38:39]", "v[46:47]") for r in rd1]
        mf1 = [m.replace("v[32:35]", "v[40:43]").replace("v[36:39]", "v[44:47]") for m in mf1]
        for r in rd0 + rd1: p(r)
        dl = wo_list((ks + 1) % 2) if ks < 7 else []
        if dl: dl[-1] += "\ns_add_u32 s83, s83, 20480"
        for t in dl: p(t)
        for m in mf0 + mf1: p(m)
        if ks < 7: p("s_waitcnt vmcnt(0)")
    tiles = []
    for half in range(2):
        for i in range(2):
            for qt in range(3):
                tiles.append((16*((2*half + i)*3 + qt), (qt*20 + CT_L[half][i])*2048))
    p("s_mov_b32 s32, 0")
    store_tiles(p, tiles, "s32", cfg)
    finish(p, cfg, 3)

def attn_kernel(cfg):
    p = Prog()
    setup(p, cfg)
    prologue(p, cfg)
    p("s_cmp_eq_u32 s3, 3\ns_cbranch_scc1 L_loader")
    attention(p, cfg)
    p.label("L_loader")
    p("s_nop 7\ns_nop 7")
    loader(p, cfg)
    p.label("L_exit")
    p("s_endpgm")
    return p.text()

def reduce_kernel(cfg):
    p = Prog()
    p("""
    s_cmp_ge_u32 s2, 480
    s_cbranch_scc1 L_rexit
    s_load_dwordx2 s[8:9], s[0:1], 96
    s_load_dwordx2 s[12:13], s[0:1], 80
    v_lshrrev_b32 v1, 6, v0
    v_and_b32 v7, 63, v0
    v_readfirstlane_b32 s3, v1
    s_lshl_b32 s4, s2, 2
    s_add_u32 s4, s4, s3
    s_mul_i32 s5, s4, 17477
    s_lshr_b32 s5, s5, 20
    s_mul_i32 s6, s5, 60
    s_sub_u32 s6, s4, s6
    s_mul_i32 s16, s5, 983040
    s_lshl_b32 s17, s6, 11
    s_add_u32 s16, s16, s17
    v_lshlrev_b32 v0, 4, v7
    s_mov_b32 s10, 31457280
    s_mov_b32 s11, 0x20000
    s_mov_b32 s14, 3932160
    s_mov_b32 s15, 0x20000
    s_waitcnt lgkmcnt(0)
    """)
    LP = cfg.get("lpol", "")
    for g in range(8):
        p(f"buffer_load_dwordx4 {vr(16+8*g)}, v0, s[8:11], s16 offen{LP}")
        p(f"buffer_load_dwordx4 {vr(20+8*g)}, v0, s[8:11], s16 offen offset:1024{LP}")
        if g < 7: p("s_add_u32 s16, s16, 122880")
    p("""
    s_mul_i32 s17, s6, 13
    s_lshr_b32 s17, s17, 8
    s_mul_i32 s18, s17, 20
    s_sub_u32 s18, s6, s18
    s_and_b32 s19, s5, 15
    s_mul_i32 s19, s19, 96
    s_lshl_b32 s17, s17, 5
    s_add_u32 s19, s19, s17
    s_mul_i32 s19, s19, 2560
    s_lshr_b32 s17, s5, 4
    s_mul_i32 s17, s17, 1280
    s_add_u32 s19, s19, s17
    s_lshl_b32 s18, s18, 6
    s_add_u32 s19, s19, s18
    v_bfe_u32 v2, v7, 3, 1
    v_lshlrev_b32 v2, 4, v2
    v_and_b32 v3, 3, v7
    v_lshlrev_b32 v3, 2, v3
    v_add_u32 v2, v2, v3
    v_bfe_u32 v3, v7, 4, 1
    v_lshlrev_b32 v3, 1, v3
    v_add_u32 v2, v2, v3
    v_bfe_u32 v3, v7, 2, 1
    v_add_u32 v2, v2, v3
    v_mul_u32_u24 v2, 2560, v2
    v_lshrrev_b32 v3, 5, v7
    v_lshlrev_b32 v3, 4, v3
    v_add_u32 v2, v2, v3
    """)
    A = 80
    for g in range(8):
        p(f"s_waitcnt vmcnt({14 - 2*g})")
        for i in range(8):
            s = 16 + 8*g + i
            if g == 0:
                p(f"v_lshlrev_b32 v{A+2*i}, 16, v{s}\nv_and_b32 v{A+2*i+1}, 0xffff0000, v{s}")
            else:
                p(f"v_lshlrev_b32 v4, 16, v{s}\nv_and_b32 v5, 0xffff0000, v{s}")
                p(f"v_add_f32 v{A+2*i}, v{A+2*i}, v4\nv_add_f32 v{A+2*i+1}, v{A+2*i+1}, v5")
    for i in range(8): p(f"v_cvt_pk_bf16_f32 v{8+i}, v{A+2*i}, v{A+2*i+1}")
    p("""
    v_permlane32_swap_b32 v8, v10
    v_permlane32_swap_b32 v9, v11
    v_permlane32_swap_b32 v12, v14
    v_permlane32_swap_b32 v13, v15
    s_nop 1
    buffer_store_dwordx4 v[8:11], v2, s[12:15], s19 offen
    buffer_store_dwordx4 v[12:15], v2, s[12:15], s19 offen offset:32
    """)
    p.label("L_rexit")
    p("s_endpgm")
    return p.text()

def gen(cfg):
    s = "; attention (Q-proj, flash attention, O-proj partials) + cross-group reduce\n"
    s += "; @launch kernel=attn_kernel grid=(256,1,1) block=(256,1,1) lds=163840\n"
    s += "; @launch kernel=reduce_kernel grid=(480,1,1) block=(256,1,1) lds=0\n"
    s += '.amdgcn_target "amdgcn-amd-amdhsa--gfx950"\n'
    s += kernel_head("attn_kernel") + attn_kernel(cfg)
    s += kernel_head("reduce_kernel") + reduce_kernel(cfg)
    s += kernel_block("attn_kernel", 512, 256)
    s += kernel_block("reduce_kernel", 96, 96)
    return s

if __name__ == "__main__":
    open("out/k1.s", "w").write(gen({}))
    open("out/k1s.s", "w").write(gen({"stamps": 1}))
```

```python
import sys, struct, math
from asmlib import *
from prog import Prog

def f32(x): return "0x%08x" % struct.unpack("<I", struct.pack("<f", x))[0]
C = (128 ** -0.5) * math.log2(math.e)
THR = 8.0 / C
WS = 293339136

KVS = 17024; VOFF = 8320
WO0 = 68096; WOS = 21760
OBUF = 111616; QBUF = 136192; SPARE = 160768
XSLOT = [24960, 51072, 0]
RING = 76032; RINGW = 4 * 4352
QT0 = 51072

def vr(b, n=4): return f"v[{b}:{b+n-1}]"
def ar(b, n=16): return f"a[{b}:{b+n-1}]"

class VM:
    def __init__(self, p): self.p = p; self.q = []
    def issue(self, tag): self.q.append(tag)
    def wait(self, *tags):
        last = -1
        for i, t in enumerate(self.q):
            if t in tags: last = i
        if last < 0: return
        n = len(self.q) - 1 - last
        assert n <= 63
        self.p(f"s_waitcnt vmcnt({n})")
        self.q = self.q[last + 1:]
    def cap(self, more):
        if len(self.q) + more > 63:
            n = 63 - more
            self.p(f"s_waitcnt vmcnt({n})")
            self.q = self.q[len(self.q) - n:]

SREG = [84, 86, 88, 90, 92, 94, 96, 98, 100, 36, 38, 40, 42, 44, 46, 48, 50, 52, 54]
def stamp(p, j, cfg, clk=False):
    if cfg.get("stamps"): p(f"s_mem{'' if clk else 'real'}time s[{SREG[j]}:{SREG[j]+1}]")
def rstamp(p, j0, cfg, sreg, n, tag):
    if not cfg.get("stamps"): return
    for i in range(n):
        p(f"s_cmp_eq_u32 {sreg}, {i}\ns_cbranch_scc0 L_st_{tag}_{i}")
        stamp(p, j0 + i, cfg)
        p.label(f"L_st_{tag}_{i}")

def setup(p, cfg):
    p("""
    s_cmp_ge_u32 s2, 256
    s_cbranch_scc1 L_exit
    """)
    stamp(p, 0, cfg)
    p("""
    s_load_dwordx16 s[36:51], s[0:1], 0
    s_load_dwordx4 s[52:55], s[0:1], 64
    s_load_dwordx2 s[56:57], s[0:1], 96
    v_lshrrev_b32 v1, 6, v0
    v_and_b32 v7, 63, v0
    v_readfirstlane_b32 s3, v1
    s_and_b32 s4, s2, 7
    s_lshr_b32 s5, s2, 3
    s_lshr_b32 s6, s5, 4
    s_lshl_b32 s4, s4, 1
    s_add_u32 s4, s4, s6
    s_and_b32 s5, s5, 15
    s_lshr_b32 s6, s4, 3
    s_and_b32 s4, s4, 7
    """)
    p("""
    v_lshlrev_b32 v0, 4, v7
    v_lshrrev_b32 v8, 4, v7
    v_and_b32 v9, 15, v7
    v_lshrrev_b32 v10, 1, v8
    v_lshlrev_b32 v10, 3, v10
    v_xor_b32 v10, v10, v9
    v_lshlrev_b32 v10, 4, v10
    v_lshlrev_b32 v6, 8, v8
    v_add_u32 v6, v6, v10
    v_mul_u32_u24 v4, 1280, v8
    v_add_u32 v4, v4, v10
    v_lshlrev_b32 v5, 15, v8
    v_lshlrev_b32 v9, 4, v9
    v_add_u32 v5, v5, v9
    s_lshl_b32 s32, s3, 8
    v_add_u32 v5, s32, v5
    """)
    p("""
    s_and_b32 s32, s4, 1
    s_mul_i32 s32, s32, 3
    s_add_u32 s32, s32, s5
    s_mul_i32 s33, s32, 52
    s_lshr_b32 s33, s33, 8
    s_mul_i32 s33, s33, 5
    s_sub_u32 s32, s32, s33
    s_mul_i32 s34, s3, 30720
    """)
    for it in range(5):
        p(f"""
        s_lshl_b32 s{60+it}, s32, 20
        s_lshl_b32 s33, s32, 8
        s_add_u32 s{65+it}, s33, s34
        s_add_u32 s32, s32, 1
        s_cmp_eq_u32 s32, 5
        s_cselect_b32 s32, 0, s32
        """)
    p(f"""
    s_mul_i32 s70, s3, 6240
    s_mul_i32 s71, s3, {RINGW}
    s_add_u32 s71, s71, {RING}
    s_mul_i32 s72, s3, 2080
    s_mul_i32 s73, s3, 2176
    s_lshl_b32 s74, s3, 11
    s_mov_b32 s76, {f32(C)}
    s_waitcnt lgkmcnt(0)
    s_cmp_eq_u32 s6, 0
    s_cselect_b32 s16, s36, s46
    s_cselect_b32 s17, s37, s47
    s_cselect_b32 s20, s42, s52
    s_cselect_b32 s21, s43, s53
    s_cselect_b32 s8, s38, s48
    s_cselect_b32 s9, s39, s49
    s_cselect_b32 s12, s40, s50
    s_cselect_b32 s13, s41, s51
    s_cselect_b32 s24, s44, s54
    s_cselect_b32 s25, s45, s55
    s_mul_i32 s32, s5, 122880
    s_add_u32 s16, s16, s32
    s_addc_u32 s17, s17, 0
    s_mov_b32 s18, 122880
    s_mov_b32 s19, 0x20000
    s_lshl_b32 s32, s4, 10
    s_add_u32 s20, s20, s32
    s_addc_u32 s21, s21, 0
    s_sub_u32 s22, 5242880, s32
    s_mov_b32 s23, 0x20000
    """)

def setup2(p, cfg):
    p(f"""
    s_lshl_b32 s32, s5, 3
    s_add_u32 s32, s32, s4
    s_lshl_b32 s32, s32, 19
    s_add_u32 s8, s8, s32
    s_addc_u32 s9, s9, 0
    s_mov_b32 s10, 524288
    s_mov_b32 s11, 0x20000
    s_add_u32 s12, s12, s32
    s_addc_u32 s13, s13, 0
    s_mov_b32 s14, 524288
    s_mov_b32 s15, 0x20000
    s_mul_i32 s32, s4, 655360
    s_add_u32 s24, s24, s32
    s_addc_u32 s25, s25, 0
    s_mov_b32 s26, 655360
    s_mov_b32 s27, 0x20000
    s_lshl_b32 s32, s6, 4
    s_add_u32 s32, s32, s5
    s_lshl_b32 s32, s32, 3
    s_add_u32 s32, s32, s4
    s_mul_i32 s32, s32, 122880
    s_add_u32 s28, s56, s32
    s_addc_u32 s29, s57, 0
    s_mov_b32 s30, 122880
    s_mov_b32 s31, 0x20000
    """)
    if cfg.get("nomem"): p("s_mov_b32 s10, 0\ns_mov_b32 s14, 0\ns_mov_b32 s26, 0")
    kread(p, 1, 2, 8)
    p("""
    v_bfe_u32 v8, v7, 2, 2
    v_mul_u32_u24 v3, 1088, v8
    v_lshrrev_b32 v8, 5, v7
    v_lshlrev_b32 v8, 9, v8
    v_add_u32 v3, v3, v8
    v_bfe_u32 v8, v7, 4, 1
    v_lshlrev_b32 v8, 5, v8
    v_add_u32 v3, v3, v8
    v_and_b32 v8, 1, v7
    v_lshlrev_b32 v8, 4, v8
    v_add_u32 v3, v3, v8
    v_bfe_u32 v8, v7, 1, 1
    v_lshlrev_b32 v8, 3, v8
    v_add_u32 v3, v3, v8
    v_add_u32 v3, s71, v3
    """)

def kread(p, d0, d1, t):
    p(f"""
    v_bfe_u32 v{t}, v7, 3, 1
    v_lshlrev_b32 v{t}, 2, v{t}
    v_and_b32 v{t+1}, 3, v7
    v_add_u32 v{t}, v{t}, v{t+1}
    v_mul_u32_u24 v{d0}, 1040, v{t}
    v_bfe_u32 v{t}, v7, 2, 1
    v_lshlrev_b32 v{t}, 8, v{t}
    v_add_u32 v{d0}, v{d0}, v{t}
    v_lshrrev_b32 v{t}, 5, v7
    v_lshlrev_b32 v{t}, 4, v{t}
    v_add_u32 v{d0}, v{d0}, v{t}
    v_bfe_u32 v{t}, v7, 4, 1
    v_lshlrev_b32 v{t+1}, 9, v{t}
    v_add_u32 v{d0}, v{d0}, v{t+1}
    v_lshlrev_b32 v{t}, 7, v{t}
    v_sub_u32 v{d1}, v{d0}, v{t}
    v_add_u32 v{d0}, v{d0}, v{t}
    """)

def vread(p, d, t):
    p(f"""
    v_bfe_u32 v{t}, v7, 2, 2
    v_mul_u32_u24 v{d}, 1088, v{t}
    v_lshrrev_b32 v{t}, 5, v7
    v_lshlrev_b32 v{t}, 8, v{t}
    v_add_u32 v{d}, v{d}, v{t}
    v_bfe_u32 v{t}, v7, 4, 1
    v_lshlrev_b32 v{t}, 5, v{t}
    v_add_u32 v{d}, v{d}, v{t}
    v_and_b32 v{t}, 3, v7
    v_lshlrev_b32 v{t}, 3, v{t}
    v_add_u32 v{d}, v{d}, v{t}
    """)

def prologue(p, cfg):
    vm = VM(p)
    XP = cfg.get("xpol", " nt"); QP = cfg.get("qpol", " nt")
    def xdma(it):
        for i in range(6):
            p(f"s_add_u32 m0, s70, {XSLOT[it % 3] + i*1040}")
            p(f"s_add_u32 s75, s{65+it}, {i*5120}")
            p(f"buffer_load_dwordx4 v4, s[16:19], s75 offen{XP} lds")
            vm.issue(("x", it))
    def wqdma_list(n):
        if n >= 40: return []
        it, j = n // 8, n % 8
        out = []
        for q in range(4):
            out.append((f"s_add_u32 m0, s71, {(n % 4)*4352 + q*1088}\n"
                        f"s_add_u32 s75, s{60+it}, {(j*16+q)*8192}\n"
                        f"buffer_load_dwordx4 v5, s[20:23], s75 offen{QP} lds", ("wq", n)))
        return out
    def wqdma(n):
        for t, tag in wqdma_list(n):
            p(t); vm.issue(tag)
    def kvpart(T_k, T_v):
        for i in range(2):
            if T_k is not None:
                p(f"s_add_u32 m0, s72, {(T_k % 4)*KVS + i*1040}")
                p(f"s_add_u32 s75, s74, {T_k*8192 + i*1024}")
                p("buffer_load_dwordx4 v6, s[8:11], s75 offen nt lds"); vm.issue("kv")
            if T_v is not None:
                p(f"s_add_u32 m0, s73, {((T_v+1) % 4)*KVS + VOFF + i*1088}")
                p(f"s_add_u32 s75, s74, {T_v*8192 + i*1024}")
                p("buffer_load_dwordx4 v0, s[12:15], s75 offen nt lds"); vm.issue("kv")
    FS = [8, 36]
    def frag_reads(n):
        j = n % 8; b = FS[n % 2]
        out = []
        for qt in range(3):
            out.append(f"ds_read_b128 {vr(b+16+4*qt)}, v{1 if j < 4 else 2} offset:{qt*8320 + 32*j}")
        for dt in range(4):
            for jh in range(2):
                out.append(f"ds_read_b64_tr_b16 {vr(b+4*dt+2*jh, 2)}, v3 offset:{(n % 4)*4352 + jh*256 + dt*64}")
        o = [out[0], out[3], out[4], out[1], out[2]] + out[5:]
        return o
    xdma(0)
    for n in range(4): wqdma(n)
    xdma(1); xdma(2)
    setup2(p, cfg)
    p(f"v_add_u32 v1, {XSLOT[0]}, v1\nv_add_u32 v2, {XSLOT[0]}, v2")
    for i in range(256): p(f"v_accvgpr_write_b32 a{i}, 0")
    vm.wait(("x", 0), ("wq", 0))
    p("s_barrier")
    stamp(p, 1, cfg)
    for r in frag_reads(0): p(r)
    p("s_waitcnt lgkmcnt(0)")
    wqdma(4)
    for n in range(40):
        it, j = n // 8, n % 8
        b = FS[n % 2]
        fill = []
        if n < 39:
            if j == 7:
                vm.wait(("wq", n + 1), ("x", it + 1))
                p("s_barrier")
                d = (XSLOT[(it + 1) % 3] - XSLOT[it % 3]) & 0xffffffff
                p(f"v_add_u32 v1, {d}, v1\nv_add_u32 v2, {d}, v2")
            else:
                vm.wait(("wq", n + 1))
            fill = frag_reads(n + 1)
        mf = []
        for dt in range(4):
            for qt in range(3):
                acc = vr(64 + 16*(dt*3 + qt), 16)
                mf.append(f"v_mfma_f32_32x32x16_bf16 {acc}, {vr(b+4*dt)}, {vr(b+16+4*qt)}, {acc if n else 0}")
        k = 0
        for i, m in enumerate(mf):
            p(m)
            if i < 6:
                for _ in range(2):
                    if k < len(fill): p(fill[k]); k += 1
            if i == 5 and j == 7 and n < 39:
                if it == 0: xdma(3)
                elif it == 1: xdma(4)
                elif it == 2: kvpart(0, None)
                elif it == 3: kvpart(1, 0); kvpart(2, 1)
            if i == 7 and n < 39:
                p("s_waitcnt lgkmcnt(0)")
                wl = wqdma_list(n + 5)
            if i >= 8 and n < 39 and i - 8 < len(wl):
                p(wl[i - 8][0]); vm.issue(wl[i - 8][1])
    stamp(p, 2, cfg)
    p(f"""
    s_mul_i32 s32, s3, 24576
    s_mov_b32 s33, {QT0}
    s_cmp_lt_u32 s3, 2
    s_cselect_b32 s33, s33, {OBUF - 2*24576}
    s_add_u32 s32, s32, s33
    v_add_u32 v4, s32, v0
    """)
    for dt in range(4):
        for qt in range(3):
            a = 64 + 16*(dt*3 + qt)
            for i in range(8): p(f"v_cvt_pk_bf16_f32 v{a+i}, v{a+2*i}, v{a+2*i+1}")
    p("s_waitcnt vmcnt(0)\ns_barrier")
    for dt in range(4):
        for qt in range(3):
            a = 64 + 16*(dt*3 + qt)
            for h in range(2):
                p(f"ds_write_b128 v4, {vr(a+4*h)} offset:{qt*8192 + (2*dt+h)*1024}")
    p("s_waitcnt lgkmcnt(0)\ns_barrier")

vA0, vA1, vV, vW, vO, vM, vMc, vThr, vL0, vL1, vT = 1, 2, 3, 4, 5, 6, 8, 9, 10, 11, 12
OF = 16; PF = 20; F0 = 32; S0 = 96; QA = 128; QB = 160; OA = 192
CT_A = [list(range(0, 8)), list(range(10, 18))]

def softmax_list(S):
    L = []
    fma = lambda e: f"v_fma_f32 v{S+e}, v{S+e}, s76, v{vMc}"
    ex = lambda e: f"v_exp_f32 v{S+e}, v{S+e}"
    ad = lambda e: f"v_add_f32 v{vL0 + e % 2}, v{vL0 + e % 2}, v{S+e}"
    cv = lambda i: f"v_cvt_pk_bf16_f32 v{PF+i}, v{S+2*i}, v{S+2*i+1}"
    for e in range(3): L.append(fma(e))
    for e in range(16):
        L.append(ex(e))
        if e + 3 < 16: L.append(fma(e + 3))
        if e >= 2: L.append(ad(e - 2))
        if e >= 3 and e % 2 == 1: L.append(cv((e - 3) // 2))
    L += [ad(14), ad(15), cv(7)]
    return L

def tmax_list(S):
    L = [f"v_max3_f32 v{vT}, v{S}, v{S+1}, v{S+2}", f"v_max3_f32 v13, v{S+3}, v{S+4}, v{S+5}"]
    L += [f"v_max3_f32 v{vT}, v{vT}, v{S+6}, v{S+7}", f"v_max3_f32 v13, v13, v{S+8}, v{S+9}"]
    L += [f"v_max3_f32 v{vT}, v{vT}, v{S+10}, v{S+11}", f"v_max3_f32 v13, v13, v{S+12}, v{S+13}"]
    L += [f"v_max3_f32 v{vT}, v{vT}, v{S+14}, v{S+15}", f"v_max_f32 v{vT}, v{vT}, v13"]
    L += [f"v_cmp_gt_f32 vcc, v{vT}, v{vThr}"]
    return L

def wo_reads(ct, slot, dst):
    return [f"ds_read_b64_tr_b16 {vr(dst+2*jh, 2)}, v{vW} offset:{slot*WOS + (ct//4)*4352 + jh*512 + (ct % 4)*64}" for jh in range(2)]

def qk_mfmas(Sn):
    return [f"v_mfma_f32_32x32x16_bf16 {vr(Sn,16)}, {vr(F0+4*m)}, {vr(QA+4*m)}, {vr(Sn,16) if m else 0}" for m in range(8)]
def k_reads(slot):
    return [f"ds_read_b128 {vr(F0+4*m)}, v{vA0 if m < 4 else vA1} offset:{slot*KVS + 32*m}" for m in range(8)]

def halfstep(p, hs, oproj, tag, stubs, cfg={}):
    if cfg.get("nocompute"):
        p("s_barrier")
        if hs == 3: p.label(f"L_qr_{tag}")
        return
    par = hs % 2; Sc = S0 + 16*par; Sn = S0 + 16*(1 - par)
    slot = (hs + 1) % 4; half = hs % 2; wslot = (hs // 2) % 2
    p("s_barrier")
    p(f"s_cbranch_vccnz L_rs_{tag}_{hs}")
    p.label(f"L_rr_{tag}_{hs}")
    stubs.append((f"L_rs_{tag}_{hs}", f"L_rr_{tag}_{hs}"))
    if hs == 3:
        p(f"s_cmp_eq_u32 s77, 3\ns_cbranch_scc1 L_qs_{tag}")
        p.label(f"L_qr_{tag}")
    for r in k_reads(slot): p(r)
    if oproj and half == 0:
        p(f"ds_read_b128 {vr(OF)}, v{vO} offset:{(hs // 2)*1024}")
    sm = softmax_list(Sc)
    vb = F0 if oproj else F0 + 32
    vreads = []
    for f in range(2):
        for dt in range(4):
            for jh in range(2):
                vreads.append(f"ds_read_b64_tr_b16 {vr(vb+4*(4*f+dt)+2*jh, 2)}, v{vV} offset:{slot*KVS + VOFF + jh*4352 + f*512 + dt*64}")
    pre = 20 if oproj else 24
    k = 0
    for _ in range(pre): p(sm[k]); k += 1
    r1 = []
    if oproj:
        for i, ct in enumerate(CT_A[half]): r1 += wo_reads(ct, wslot, F0 + 32 + 4*i)
    else:
        r1 = vreads
    per = 3 if oproj else 4
    for m, mf in enumerate(qk_mfmas(Sn)):
        p(mf)
        p(r1[2*m]); p(r1[2*m + 1])
        for _ in range(per):
            if k < len(sm): p(sm[k]); k += 1
    if oproj:
        for i in range(8):
            acc = ar(16*(8*half + i))
            p(f"v_mfma_f32_32x32x16_bf16 {acc}, {vr(F0+32+4*i)}, {vr(OF)}, {acc}")
            p(vreads[2*i]); p(vreads[2*i + 1])
            for _ in range(2):
                if k < len(sm): p(sm[k]); k += 1
    while k < len(sm): p(sm[k]); k += 1
    tm = tmax_list(Sn); k = 0
    for f in range(2):
        for dt in range(4):
            acc = vr(OA + 16*dt, 16)
            p(f"v_mfma_f32_32x32x16_bf16 {acc}, {vr(vb+4*(4*f+dt))}, {vr(PF+4*f)}, {acc}")
            if f == 1 or dt >= 2 or oproj:
                for _ in range(2):
                    if k < len(tm): p(tm[k]); k += 1
    while k < len(tm): p(tm[k]); k += 1

def rescale_stub(p, lab, ret):
    p.label(lab)
    p(f"""
    s_nop 7
    s_nop 7
    v_mov_b32 v13, v{vT}
    v_permlane32_swap_b32 v13, v{vT}
    v_max_f32 v13, v13, v{vT}
    v_max_f32 v13, v13, v{vM}
    v_sub_f32 v14, v{vM}, v13
    v_mul_f32 v14, s76, v14
    v_exp_f32 v14, v14
    v_mov_b32 v{vM}, v13
    v_mul_f32 v{vMc}, s76, v13
    v_sub_f32 v{vMc}, 0, v{vMc}
    v_add_f32 v{vThr}, {f32(THR)}, v13
    v_mul_f32 v{vL0}, v{vL0}, v14
    v_mul_f32 v{vL1}, v{vL1}, v14
    """)
    for i in range(64): p(f"v_mul_f32 v{OA+i}, v{OA+i}, v14")
    p(f"s_branch {ret}")

def round_end(p):
    p(f"""
    v_add_f32 v{vL0}, v{vL0}, v{vL1}
    v_mov_b32 v13, v{vL0}
    v_permlane32_swap_b32 v13, v{vL0}
    v_add_f32 v13, v13, v{vL0}
    v_rcp_f32 v13, v13
    v_add_u32 v{vO}, {(-8192) & 0xffffffff}, v{vO}
    v_mov_b32 v{vM}, {f32(-3e38)}
    """)
    for dt in range(4):
        t = F0 + 8*dt
        for i in range(16): p(f"v_mul_f32 v{OA+16*dt+i}, v{OA+16*dt+i}, v13")
        for i in range(8): p(f"v_cvt_pk_bf16_f32 v{t+i}, v{OA+16*dt+2*i}, v{OA+16*dt+2*i+1}")
        for a in range(2): p(f"ds_write_b128 v{vO}, {vr(t+4*a)} offset:{(2*dt+a)*1024}")
    p("s_mov_b64 vcc, -1\ns_waitcnt lgkmcnt(0)")

def attention(p, cfg):
    stubs = []
    p(f"""
    s_lshl_b32 s32, s3, 13
    v_add_u32 v{vO}, s32, v0
    """)
    for m in range(8): p(f"ds_read_b128 {vr(QA+4*m)}, v{vO} offset:{QT0 + m*1024}")
    p(f"v_add_u32 v13, {QT0 + 24576}, v{vO}")
    for m in range(8): p(f"ds_read_b128 {vr(QB+4*m)}, v13 offset:{m*1024}")
    kread(p, vA0, vA1, 14)
    vread(p, vV, 14)
    p(f"""
    v_add_u32 v{vW}, {WO0}, v{vV}
    v_add_u32 v{vO}, {OBUF}, v{vO}
    v_mov_b32 v{vM}, {f32(-3e38)}
    v_mov_b32 v{vL0}, 0
    v_mov_b32 v{vL1}, 0
    v_mov_b32 v{vThr}, 0
    """)
    for r in k_reads(0): p(r)
    for i in range(64): p(f"v_mov_b32 v{OA+i}, 0")
    p("s_waitcnt lgkmcnt(0)\ns_barrier")
    for mf in qk_mfmas(S0): p(mf)
    for t in tmax_list(S0): p(t)
    p("s_mov_b64 vcc, -1\ns_mov_b32 s77, 0\ns_mov_b32 s80, 0")
    stamp(p, 3, cfg)
    stamp(p, 11, cfg, True)
    p.label("L_r0")
    for hs in range(4): halfstep(p, hs, False, "a", stubs, cfg)
    p(f"""
    v_add_u32 v{vO}, 2048, v{vO}
    s_add_u32 s77, s77, 1
    s_cmp_lt_u32 s77, 4
    s_cbranch_scc1 L_r0
    """)
    p.label("L_rend")
    rstamp(p, 7, cfg, "s80", 4, "re")
    round_end(p)
    p("""
    s_add_u32 s80, s80, 1
    s_mov_b32 s77, 0
    s_cmp_eq_u32 s80, 4
    s_cbranch_scc1 L_tail
    """)
    p.label("L_r1")
    for hs in range(4): halfstep(p, hs, True, "b", stubs, cfg)
    p(f"""
    v_add_u32 v{vO}, 2048, v{vO}
    s_add_u32 s77, s77, 1
    s_cmp_lt_u32 s77, 4
    s_cbranch_scc1 L_r1
    s_nop 7
    s_nop 3
    s_branch L_rend
    """)
    p.label("L_tail")
    stamp(p, 4, cfg)
    stamp(p, 12, cfg, True)
    for ks in range(8):
        p("s_barrier")
        p(f"ds_read_b128 {vr(OF)}, v{vO} offset:{ks*1024}")
        cts = CT_A[0] + CT_A[1]
        rd = []
        for i, ct in enumerate(cts): rd.append(wo_reads(ct, ks % 2, F0 + 4*i))
        for i in range(4):
            for r in rd[i]: p(r)
        for i in range(16):
            acc = ar(16*i)
            p(f"v_mfma_f32_32x32x16_bf16 {acc}, {vr(F0+4*i)}, {vr(OF)}, {acc}")
            if i + 4 < 16:
                for r in rd[i + 4]: p(r)
    stamp(p, 5, cfg)
    p("s_mul_i32 s32, s3, 40960")
    store_tiles(p, [(16*i, ct*2048) for i, ct in enumerate(CT_A[0] + CT_A[1])], "s32", cfg)
    finish(p, cfg, 0)
    for lab, ret in stubs: rescale_stub(p, lab, ret)
    for tag in "ab":
        p.label(f"L_qs_{tag}")
        for i in range(32): p(f"v_mov_b32 v{QA+i}, v{QB+i}")
        d = (-6144) & 0xffffffff if tag == "a" else QBUF - OBUF - 6144
        p(f"v_add_u32 v13, {d}, v{vO}")
        for m in range(8): p(f"ds_read_b128 {vr(QB+4*m)}, v13 offset:{m*1024}")
        p("s_waitcnt lgkmcnt(0)")
        p(f"s_branch L_qr_{tag}")

def store_tiles(p, tiles, sbase, cfg):
    SP = cfg.get("spol", "")
    for n, (a, off) in enumerate(tiles):
        t = F0 + 16*(n % 4)
        for i in range(16): p(f"v_accvgpr_read_b32 v{t+i}, a{a+i}")
        for i in range(8): p(f"v_cvt_pk_bf16_f32 v{t+i}, v{t+2*i}, v{t+2*i+1}")
        p(f"s_add_u32 s75, {sbase}, {off}")
        p(f"buffer_store_dwordx4 {vr(t)}, v0, s[28:31], s75 offen{SP}")
        p(f"buffer_store_dwordx4 {vr(t+4)}, v0, s[28:31], s75 offen offset:1024{SP}")

def finish(p, cfg, w):
    if cfg.get("stamps") and w == cfg.get("stampwave", 0):
        n = 8
        p("s_waitcnt vmcnt(0)")
        stamp(p, 6, cfg)
        if w == 0: p("s_cmp_eq_u32 s3, 0\ns_cbranch_scc0 L_exit")
        p(f"""
        s_lshl_b32 s32, s2, 9
        s_add_u32 s56, s56, s32
        s_addc_u32 s57, s57, 0
        s_add_u32 s56, s56, {WS - 256*512}
        s_addc_u32 s57, s57, 0
        s_waitcnt lgkmcnt(0)
        v_mov_b32 v14, 0
        """)
        for j in range(len(SREG)):
            p(f"v_mov_b32 v10, s{SREG[j]}\nv_mov_b32 v11, s{SREG[j]+1}\nglobal_store_dwordx2 v14, v[10:11], s[56:57] offset:{8*j}\ns_nop 1")
    p("s_endpgm")

CT_L = [[8, 9], [18, 19]]
def loader(p, cfg):
    WP = cfg.get("wpol", "")
    vm = VM(p)
    def kv_list(slot):
        L = []
        for q in range(8):
            L.append(f"s_mov_b32 m0, {slot*KVS + q*1040 - (q % 4)*1024}\ns_nop 0\nbuffer_load_dwordx4 v6, s[8:11], s{81 + q//4} offen offset:{(q % 4)*1024} nt lds")
        for q in range(8):
            L.append(f"s_mov_b32 m0, {slot*KVS + VOFF + q*1088 - (q % 4)*1024}\ns_nop 0\nbuffer_load_dwordx4 v0, s[12:15], s{78 + q//4} offen offset:{(q % 4)*1024} nt lds")
        return L
    kv_adv = "s_mov_b32 s78, s81\ns_mov_b32 s79, s82\ns_add_u32 s81, s81, 8192\ns_add_u32 s82, s82, 8192"
    def wo_list(slot):
        L = []
        for q in range(4):
            for blk in range(5):
                pre = f"s_add_u32 s75, s83, {q*1280}" if blk == 0 else "s_nop 0"
                L.append(f"s_mov_b32 m0, {WO0 + slot*WOS + blk*4352 + q*1088 - blk*256}\n{pre}\nbuffer_load_dwordx4 v5, s[24:27], s75 offen offset:{blk*256}{WP} lds")
        return L
    vread(p, vW, 14)
    p(f"""
    v_add_u32 v{vW}, {WO0}, v{vW}
    v_add_u32 v2, {OBUF}, v0
    v_lshrrev_b32 v8, 4, v7
    v_mul_u32_u24 v5, 5120, v8
    v_and_b32 v8, 15, v7
    v_lshlrev_b32 v8, 4, v8
    v_add_u32 v5, v5, v8
    s_mov_b32 s78, {2*8192}
    s_mov_b32 s79, {2*8192 + 4096}
    s_mov_b32 s81, {3*8192}
    s_mov_b32 s82, {3*8192 + 4096}
    s_mul_i32 s33, s5, 40960
    s_mov_b32 s83, 0
    s_barrier
    """)
    for t in kv_list(3): p(t); vm.issue(("kv", 2))
    p(kv_adv)
    wn = 0
    for T in range(16):
        vm.wait(("kv", T))
        p("s_barrier")
        if T % 2 == 0:
            if T == 14:
                for t in wo_list(0): p(t); vm.issue(("wo", 8))
                p("s_add_u32 s83, s83, 20480")
            elif cfg.get("warm", 1):
                for i in range(6):
                    if wn < 40:
                        p(f"s_mov_b32 m0, {SPARE}\ns_add_u32 s75, s33, {wn*1024}\nbuffer_load_dwordx4 v0, s[24:27], s75 offen{cfg.get('warmpol','')} lds")
                        vm.issue("warm"); wn += 1
        vm.cap(16)
        for t in kv_list((T + 4) % 4): p(t); vm.issue(("kv", T + 3))
        p(kv_adv)
    p("s_mov_b32 s77, 0\ns_mov_b32 s80, 0")
    def oproj3(half, wslot, ksoff, first):
        rd = []
        if half == 0:
            for qt in range(3): rd.append(f"ds_read_b128 {vr(16+4*qt)}, v2 offset:{qt*8192 + ksoff}")
        for i, ct in enumerate(CT_L[half]): rd += wo_reads(ct, wslot, 32 + 4*i)
        mf = []
        for i in range(2):
            for qt in range(3):
                acc = ar(16*((2*half + i)*3 + qt))
                mf.append(f"v_mfma_f32_32x32x16_bf16 {acc}, {vr(32+4*i)}, {vr(16+4*qt)}, {acc}")
        return rd, mf
    p.label("L_ld")
    for hs in range(4):
        p(f"s_waitcnt vmcnt({32 if hs % 2 == 0 else 52})")
        p("s_barrier")
        rd, mf = oproj3(hs % 2, hs // 2, (hs // 2)*1024, False)
        for r in rd: p(r)
        dl = []
        if hs % 2 == 0:
            dl += wo_list((hs // 2 + 1) % 2)
            dl[-1] += "\ns_add_u32 s83, s83, 20480\ns_waitcnt vmcnt(46)"
        dl += kv_list(hs % 4)
        k = 0
        step = len(dl) // 8
        for i, t in enumerate(dl):
            p(t)
            if i % step == step - 1 and i // step >= 2 and k < 6:
                p(mf[k]); k += 1
        while k < 6: p(mf[k]); k += 1
        p(kv_adv)
    p(f"""
    v_add_u32 v2, 2048, v2
    s_add_u32 s77, s77, 1
    s_and_b32 s32, s77, 3
    s_cmp_eq_u32 s32, 0
    s_cbranch_scc0 L_ld
    v_add_u32 v2, {(-8192) & 0xffffffff}, v2
    s_cmp_lt_u32 s77, 12
    s_cbranch_scc1 L_ld
    """)
    p("s_waitcnt vmcnt(32)")
    for ks in range(8):
        p("s_barrier")
        rd0, mf0 = oproj3(0, ks % 2, ks*1024, False)
        rd1, mf1 = oproj3(1, ks % 2, ks*1024, False)
        rd1 = [r.replace("v[32:33]", "v[40:41]").replace("v[34:35]", "v[42:43]").replace("v[36:37]", "v[44:45]").replace("v[38:39]", "v[46:47]") for r in rd1]
        mf1 = [m.replace("v[32:35]", "v[40:43]").replace("v[36:39]", "v[44:47]") for m in mf1]
        for r in rd0 + rd1: p(r)
        dl = wo_list((ks + 1) % 2) if ks < 7 else []
        if dl: dl[-1] += "\ns_add_u32 s83, s83, 20480"
        for t in dl: p(t)
        for m in mf0 + mf1: p(m)
        if ks < 7: p("s_waitcnt vmcnt(0)")
    tiles = []
    for half in range(2):
        for i in range(2):
            for qt in range(3):
                tiles.append((16*((2*half + i)*3 + qt), (qt*20 + CT_L[half][i])*2048))
    p("s_mov_b32 s32, 0")
    store_tiles(p, tiles, "s32", cfg)
    finish(p, cfg, 3)

def attn_kernel(cfg):
    p = Prog()
    setup(p, cfg)
    prologue(p, cfg)
    p("s_cmp_eq_u32 s3, 3\ns_cbranch_scc1 L_loader")
    attention(p, cfg)
    p.label("L_loader")
    p("s_nop 7\ns_nop 7")
    loader(p, cfg)
    p.label("L_exit")
    p("s_endpgm")
    return p.text()

def reduce_kernel(cfg):
    p = Prog()
    p("""
    s_cmp_ge_u32 s2, 480
    s_cbranch_scc1 L_rexit
    s_load_dwordx2 s[8:9], s[0:1], 96
    s_load_dwordx2 s[12:13], s[0:1], 80
    v_lshrrev_b32 v1, 6, v0
    v_and_b32 v7, 63, v0
    v_readfirstlane_b32 s3, v1
    s_lshl_b32 s4, s2, 2
    s_add_u32 s4, s4, s3
    s_mul_i32 s5, s4, 17477
    s_lshr_b32 s5, s5, 20
    s_mul_i32 s6, s5, 60
    s_sub_u32 s6, s4, s6
    s_mul_i32 s16, s5, 983040
    s_lshl_b32 s17, s6, 11
    s_add_u32 s16, s16, s17
    v_lshlrev_b32 v0, 4, v7
    s_mov_b32 s10, 31457280
    s_mov_b32 s11, 0x20000
    s_mov_b32 s14, 3932160
    s_mov_b32 s15, 0x20000
    s_waitcnt lgkmcnt(0)
    """)
    LP = cfg.get("lpol", "")
    for g in range(8):
        p(f"buffer_load_dwordx4 {vr(16+8*g)}, v0, s[8:11], s16 offen{LP}")
        p(f"buffer_load_dwordx4 {vr(20+8*g)}, v0, s[8:11], s16 offen offset:1024{LP}")
        if g < 7: p("s_add_u32 s16, s16, 122880")
    p("""
    s_mul_i32 s17, s6, 13
    s_lshr_b32 s17, s17, 8
    s_mul_i32 s18, s17, 20
    s_sub_u32 s18, s6, s18
    s_and_b32 s19, s5, 15
    s_mul_i32 s19, s19, 96
    s_lshl_b32 s17, s17, 5
    s_add_u32 s19, s19, s17
    s_mul_i32 s19, s19, 2560
    s_lshr_b32 s17, s5, 4
    s_mul_i32 s17, s17, 1280
    s_add_u32 s19, s19, s17
    s_lshl_b32 s18, s18, 6
    s_add_u32 s19, s19, s18
    v_bfe_u32 v2, v7, 3, 1
    v_lshlrev_b32 v2, 4, v2
    v_and_b32 v3, 3, v7
    v_lshlrev_b32 v3, 2, v3
    v_add_u32 v2, v2, v3
    v_bfe_u32 v3, v7, 4, 1
    v_lshlrev_b32 v3, 1, v3
    v_add_u32 v2, v2, v3
    v_bfe_u32 v3, v7, 2, 1
    v_add_u32 v2, v2, v3
    v_mul_u32_u24 v2, 2560, v2
    v_lshrrev_b32 v3, 5, v7
    v_lshlrev_b32 v3, 4, v3
    v_add_u32 v2, v2, v3
    """)
    A = 80
    for g in range(8):
        p(f"s_waitcnt vmcnt({14 - 2*g})")
        for i in range(8):
            s = 16 + 8*g + i
            if g == 0:
                p(f"v_lshlrev_b32 v{A+2*i}, 16, v{s}\nv_and_b32 v{A+2*i+1}, 0xffff0000, v{s}")
            else:
                p(f"v_lshlrev_b32 v4, 16, v{s}\nv_and_b32 v5, 0xffff0000, v{s}")
                p(f"v_add_f32 v{A+2*i}, v{A+2*i}, v4\nv_add_f32 v{A+2*i+1}, v{A+2*i+1}, v5")
    for i in range(8): p(f"v_cvt_pk_bf16_f32 v{8+i}, v{A+2*i}, v{A+2*i+1}")
    p("""
    v_permlane32_swap_b32 v8, v10
    v_permlane32_swap_b32 v9, v11
    v_permlane32_swap_b32 v12, v14
    v_permlane32_swap_b32 v13, v15
    s_nop 1
    buffer_store_dwordx4 v[8:11], v2, s[12:15], s19 offen
    buffer_store_dwordx4 v[12:15], v2, s[12:15], s19 offen offset:32
    """)
    p.label("L_rexit")
    p("s_endpgm")
    return p.text()

def gen(cfg):
    s = "; attention (Q-proj, flash attention, O-proj partials) + cross-group reduce\n"
    s += "; @launch kernel=attn_kernel grid=(256,1,1) block=(256,1,1) lds=163840\n"
    s += "; @launch kernel=reduce_kernel grid=(480,1,1) block=(256,1,1) lds=0\n"
    s += '.amdgcn_target "amdgcn-amd-amdhsa--gfx950"\n'
    s += kernel_head("attn_kernel") + attn_kernel(cfg)
    s += kernel_head("reduce_kernel") + reduce_kernel(cfg)
    s += kernel_block("attn_kernel", 512, 256)
    s += kernel_block("reduce_kernel", 96, 96)
    return s

if __name__ == "__main__":
    open("out/k1.s", "w").write(gen({}))
    open("out/k1s.s", "w").write(gen({"stamps": 1}))
    open("out/k1_nc.s", "w").write(gen({"stamps": 1, "nocompute": 1}))
    open("out/k1_nm.s", "w").write(gen({"stamps": 1, "nomem": 1}))
```

```python
import re

def _regs(tok):
    tok = tok.strip()
    if tok.startswith('-'): tok = tok[1:]
    if tok.startswith('|') and tok.endswith('|'): tok = tok[1:-1]
    m = re.fullmatch(r'([vas])(\d+)', tok)
    if m: return {(m.group(1), int(m.group(2)))}
    m = re.fullmatch(r'([vas])\[(\d+):(\d+)\]', tok)
    if m: return {(m.group(1), i) for i in range(int(m.group(2)), int(m.group(3)) + 1)}
    if tok in ('vcc', 'vcc_lo', 'vcc_hi'): return {('x', 'vcc')}
    if tok == 'm0': return {('x', 'm0')}
    if tok in ('exec', 'exec_lo', 'exec_hi'): return {('x', 'exec')}
    return set()

TRANS = ('v_exp_f32', 'v_rcp_f32', 'v_log_f32', 'v_rsq_f32', 'v_sqrt_f32')

class I:
    __slots__ = ('t', 'op', 'k', 'rd', 'wr', 'srcC', 'srcAB', 'ws', 'data')
    def __init__(self, t):
        self.t = t
        t0 = t.split(';')[0].strip()
        self.rd = set(); self.wr = set(); self.srcC = set(); self.srcAB = set(); self.data = set()
        self.ws = 1
        if t0.endswith(':') or t0 == '' or t0.startswith('.'):
            self.op = ''; self.k = 'label' if t0.endswith(':') else 'none'; self.ws = 0; return
        parts = t0.split(None, 1)
        op = parts[0]; self.op = op
        if op == 'WAITFOR':
            self.k = 'wf'; self.ws = 0
            for x in parts[1].split(','): self.rd |= _regs(x)
            return
        ops = []
        if len(parts) > 1:
            for x in parts[1].split(','):
                ops.append(x.strip().split()[0] if x.strip() else '')
        R = [_regs(o) for o in ops]
        U = lambda l: set().union(*l) if l else set()
        if op.startswith('v_mfma'):
            self.k = 'mfma'; self.wr = R[0]; self.srcAB = R[1] | R[2]; self.srcC = R[3]; self.rd = R[1] | R[2] | R[3]
        elif op.startswith('ds_read'):
            self.k = 'dsr'; self.wr = R[0]; self.rd = R[1]
        elif op.startswith('ds_write'):
            self.k = 'dsw'; self.rd = U(R)
        elif op.startswith('buffer_load') or op.startswith('global_load'):
            if ' lds' in t0:
                self.k = 'dma'; self.rd = U(R) | {('x', 'm0')}
            else:
                self.k = 'vld'; self.wr = R[0]; self.rd = U(R[1:])
        elif op.startswith('buffer_store'):
            self.k = 'vst'; self.rd = U(R); self.data = R[0] if ('x4' in op or 'x3' in op) else set()
        elif op.startswith('global_store'):
            self.k = 'vst'; self.rd = U(R); self.data = R[1] if ('x4' in op or 'x3' in op) else set()
        elif op.startswith('buffer_atomic') or op.startswith('global_atomic'):
            self.k = 'vst'; self.rd = U(R)
            if ' sc0' in t0: self.wr = R[0]
        elif op.startswith('buffer_') :
            self.k = 'vst'
        elif op.startswith('v_permlane'):
            self.k = 'perm'; self.wr = R[0] | R[1]; self.rd = R[0] | R[1]
        elif op.startswith('v_readfirstlane') or op.startswith('v_readlane'):
            self.k = 'rdl'; self.wr = R[0]; self.rd = U(R[1:])
        elif op.startswith('v_'):
            self.k = 'trans' if op.replace('_e32', '').replace('_e64', '') in TRANS else 'valu'
            self.wr = R[0]; self.rd = U(R[1:])
            if op.startswith('v_fmac') or op.startswith('v_mac'): self.rd |= R[0]
            if op.startswith('v_cndmask') and len(R) == 3: self.rd |= {('x', 'vcc')}
            if op.startswith('v_add_co') or op.startswith('v_addc_co'): self.wr |= R[1]
        elif op == 's_nop':
            self.k = 'nop'; self.ws = int(ops[0], 0) + 1
        elif op == 's_waitcnt':
            self.k = 'wait'
        elif op == 's_barrier':
            self.k = 'bar'
        elif op.startswith('s_cbranch') or op in ('s_branch', 's_setpc_b64', 's_swappc_b64', 's_endpgm'):
            self.k = 'br'
        elif op.startswith('s_load') or op.startswith('s_memrealtime') or op.startswith('s_memtime'):
            self.k = 'smem'; self.wr = R[0]; self.rd = U(R[1:])
        elif op.startswith('s_cmp') or op.startswith('s_setprio') or op.startswith('s_bitcmp'):
            self.k = 'salu'; self.rd = U(R)
        elif op.startswith('s_'):
            self.k = 'salu'; self.wr = R[0]; self.rd = U(R[1:])
        else:
            raise ValueError('unknown instr ' + t)

VALUK = ('valu', 'trans', 'perm', 'rdl')

def need(p, c):
    n = 0
    if p.k in VALUK:
        vw = {r for r in p.wr if r[0] in 'va'}
        sw = {r for r in p.wr if r[0] == 's' or r == ('x', 'vcc')}
        if c.k == 'mfma' and vw & c.rd: n = max(n, 2)
        if c.k == 'perm' and vw & c.rd: n = max(n, 2)
        if c.k == 'rdl' and vw & c.rd: n = max(n, 1)
        if p.k == 'trans' and c.k in ('valu', 'perm', 'rdl') and vw & c.rd: n = max(n, 1)
        if sw:
            if c.k in VALUK and sw & c.rd: n = max(n, 2)
            if c.k in ('dma', 'vld', 'vst') and sw & c.rd: n = max(n, 5)
    if p.k == 'mfma':
        if c.k in VALUK and (p.wr & (c.rd | c.wr)): n = max(n, 12)
        if c.k in ('dsr', 'dsw', 'dma', 'vld', 'vst') and (p.wr & (c.rd | c.wr)): n = max(n, 12)
        if c.k == 'mfma':
            if p.wr & c.srcAB: n = max(n, 12)
            if p.wr & c.srcC and p.wr != c.srcC: n = max(n, 10)
            if p.wr & c.wr and not c.srcC and False: pass
        if c.k in VALUK and (p.srcC & c.wr): n = max(n, 7)
    if p.k == 'salu' and ('x', 'm0') in p.wr and c.k == 'dma': n = max(n, 1)
    if p.k == 'vst' and p.data and (p.data & c.wr): n = max(n, 2)
    return n

class Prog:
    def __init__(self):
        self.ins = []
    def __call__(self, s):
        for l in s.strip('\n').split('\n'):
            l = l.strip()
            if l: self.ins.append(I(l))
    def label(self, n): self.ins.append(I(n + ':'))
    def c(self, s): self.ins.append(I('; ' + s))

    def finalize(self, verbose=False):
        out = []
        q = []
        nn = 0
        for ins in self.ins:
            if ins.k in ('label', 'none'):
                out.append(ins); continue
            if ins.k == 'wait':
                m = re.search(r'lgkmcnt\((\d+)\)', ins.t)
                if m:
                    n = int(m.group(1))
                    if n < len(q): q = q[len(q) - n:] if n else []
                out.append(ins); continue
            touch = ins.rd | ins.wr
            last = -1
            for i, d in enumerate(q):
                if d & touch: last = i
            if last >= 0:
                n = min(len(q) - 1 - last, 15)
                out.append(I(f's_waitcnt lgkmcnt({n})'))
                q = q[len(q) - n:] if n else []
            if ins.k == 'wf': continue
            dist = 0; pad = 0
            for p in reversed(out):
                if p.ws == 0: continue
                r = need(p, ins)
                if r > dist: pad = max(pad, r - dist)
                dist += p.ws
                if dist >= 12: break
            while pad > 0:
                k = min(pad, 8)
                out.append(I(f's_nop {k-1}')); pad -= k; nn += 1
            out.append(ins)
            if ins.k == 'dsr': q.append(set(ins.wr))
            elif ins.k == 'dsw': q.append(set())
            elif ins.k == 'smem': pass
            if ins.k == 'bar' and q and verbose: print('warning: barrier with outstanding DS ops', len(q))
        self.nops = nn
        return out

    def text(self, verbose=False):
        o = self.finalize(verbose)
        return '\n'.join((i.t if i.k == 'label' else '    ' + i.t) for i in o) + '\n'
```

```python
import sys, struct, math
from asmlib import *
from prog import Prog
import k1
from k1 import f32, C, THR, WS, vr, ar, VM, stamp, SREG, kread, vread

KVS = 17024; VOFF = 8320
WO0 = 68096; WOS = 21760
QBUF = 111616; OBUF = 139264
XSLOT = [24960, 68096, 0]
RING = 93056; RINGW = 4 * 4352
QT0 = WO0
MF = "v_mfma_f32_32x32x16_bf16"

def setup(p, cfg):
    k1.RING = RING
    k1.setup(p, cfg)

def cost(t):
    op = t.split()[0]
    if op == "WAITFOR": return 4
    return 8 if op in ("v_exp_f32", "v_rcp_f32") else 4

def prologue(p, cfg):
    vm = VM(p)
    XP = cfg.get("xpol", " nt"); QP = cfg.get("qpol", " nt")
    def xdma(it):
        for i in range(6):
            p(f"s_add_u32 m0, s70, {XSLOT[it % 3] + i*1040}")
            p(f"s_add_u32 s75, s{65+it}, {i*5120}")
            p(f"buffer_load_dwordx4 v4, s[16:19], s75 offen{XP} lds")
            vm.issue(("x", it))
    def wqdma_list(n):
        if n >= 40: return []
        it, j = n // 8, n % 8
        out = []
        for q in range(4):
            out.append((f"s_add_u32 m0, s71, {(n % 4)*4352 + q*1088}\n"
                        f"s_add_u32 s75, s{60+it}, {(j*16+q)*8192}\n"
                        f"buffer_load_dwordx4 v5, s[20:23], s75 offen{QP} lds", ("wq", n)))
        return out
    def wqdma(n):
        for t, tag in wqdma_list(n):
            p(t); vm.issue(tag)
    def kvpart(T_k, T_v):
        for i in range(2):
            if T_k is not None:
                p(f"s_add_u32 m0, s72, {(T_k % 4)*KVS + i*1040}")
                p(f"s_add_u32 s75, s74, {T_k*8192 + i*1024}")
                p("buffer_load_dwordx4 v6, s[8:11], s75 offen nt lds"); vm.issue("kv")
            if T_v is not None:
                p(f"s_add_u32 m0, s73, {((T_v+1) % 4)*KVS + VOFF + i*1088}")
                p(f"s_add_u32 s75, s74, {T_v*8192 + i*1024}")
                p("buffer_load_dwordx4 v0, s[12:15], s75 offen nt lds"); vm.issue("kv")
    def warm_list():
        return [(f"s_add_u32 s75, s33, {i*1024}\nbuffer_load_dwordx4 a[240:243], v0, s[24:27], s75 offen{cfg.get('warmpol','')}", "warm") for i in range(10)]
    FS = [8, 36]
    def frag_reads(n):
        j = n % 8; b = FS[n % 2]
        out = []
        for qt in range(3):
            out.append(f"ds_read_b128 {vr(b+16+4*qt)}, v{1 if j < 4 else 2} offset:{qt*8320 + 32*j}")
        for dt in range(4):
            for jh in range(2):
                out.append(f"ds_read_b64_tr_b16 {vr(b+4*dt+2*jh, 2)}, v3 offset:{(n % 4)*4352 + jh*256 + dt*64}")
        return [out[0], out[3], out[4], out[1], out[2]] + out[5:]
    xdma(0)
    for n in range(4): wqdma(n)
    xdma(1); xdma(2)
    stamp(p, 13, cfg)
    k1.setup2(p, cfg)
    p(f"""
    s_load_dwordx4 s[56:59], s[0:1], 80
    s_mul_i32 s33, s5, 40960
    s_mul_i32 s32, s3, 10240
    s_add_u32 s33, s33, s32
    v_add_u32 v1, {XSLOT[0]}, v1
    v_add_u32 v2, {XSLOT[0]}, v2
    """)
    for i in range(240): p(f"v_accvgpr_write_b32 a{i}, 0")
    vm.wait(("x", 0), ("wq", 0))
    p("s_barrier")
    stamp(p, 1, cfg)
    for r in frag_reads(0): p(r)
    p("s_waitcnt lgkmcnt(0)")
    wqdma(4)
    warm = warm_list() if cfg.get("warm", 1) else []
    for n in range(40):
        it, j = n // 8, n % 8
        b = FS[n % 2]
        fill = []
        if n < 39:
            if j == 7:
                vm.wait(("wq", n + 1), ("x", it + 1))
                p("s_barrier")
                d = (XSLOT[(it + 1) % 3] - XSLOT[it % 3]) & 0xffffffff
                p(f"v_add_u32 v1, {d}, v1\nv_add_u32 v2, {d}, v2")
            else:
                vm.wait(("wq", n + 1))
            fill = frag_reads(n + 1)
        mf = []
        for dt in range(4):
            for qt in range(3):
                acc = vr(64 + 16*(dt*3 + qt), 16)
                mf.append(f"{MF} {acc}, {vr(b+4*dt)}, {vr(b+16+4*qt)}, {acc if n else 0}")
        k = 0
        wl = []
        for i, m in enumerate(mf):
            p(m)
            if i < 6:
                for _ in range(2):
                    if k < len(fill): p(fill[k]); k += 1
            if i == 5 and j == 7 and n < 39:
                if it == 0: xdma(3)
                elif it == 1: xdma(4); kvpart(3, 2)
                elif it == 2: kvpart(0, None)
                elif it == 3: kvpart(1, 0); kvpart(2, 1)
            if i == 7 and n < 39:
                p("s_waitcnt lgkmcnt(0)")
                wl = wqdma_list(n + 5)
                if n >= cfg.get("warmat", 35):
                    wl = wl + warm[:4]; warm = warm[4:]
            if i >= 8 and n < 39:
                for t, tag in wl[(i - 8)::4]:
                    p(t); vm.issue(tag)
    stamp(p, 2, cfg)
    p(f"""
    s_mov_b32 s32, {QT0}
    s_cmp_eq_u32 s3, 1
    s_cselect_b32 s32, {QBUF}, s32
    s_cmp_eq_u32 s3, 2
    s_cselect_b32 s32, {OBUF}, s32
    v_add_u32 v4, s32, v0
    """)
    for dt in range(4):
        for qt in range(3):
            a = 64 + 16*(dt*3 + qt)
            for i in range(8): p(f"v_cvt_pk_bf16_f32 v{a+i}, v{a+2*i}, v{a+2*i+1}")
    vm.wait("kv")
    p("s_barrier")
    p("s_cmp_eq_u32 s3, 3\ns_cbranch_scc1 L_loader")
    qwrite(p, 4, 0)
    p("s_waitcnt lgkmcnt(0)\ns_barrier")

def qwrite(p, va, hi):
    for dt in range(4):
        for qt in range(3):
            a = 64 + 16*(dt*3 + qt) + 8*hi
            for h in range(2):
                p(f"ds_write_b128 v{va}, {vr(a+4*h)} offset:{qt*8192 + (2*dt+h)*1024}")

vA0, vA1, vV, vW, vO, vM, vOw, vMc, vThr, vL0, vL1, vT, vR = 1, 2, 3, 4, 5, 6, 7, 8, 9, 10, 11, 12, 15
vQ = 176
OF = 16; WA = 28; PF = 40; KF = 48; V1 = 80; S0 = 96; QA = 128; V0 = 160; OA = 192

def softmax_lists(S):
    L = []; cv = []
    fma = lambda e: f"v_fma_f32 v{S+e}, v{S+e}, s76, v{vMc}"
    ex = lambda e: f"v_exp_f32 v{S+e}, v{S+e}"
    ad = lambda e: f"v_add_f32 v{vL0 + e % 2}, v{vL0 + e % 2}, v{S+e}"
    for e in range(3): L.append(fma(e))
    for e in range(16):
        L.append(ex(e))
        if e % 2 == 1: cv.append((len(L) + 1, f"v_cvt_pk_bf16_f32 v{PF+e//2}, v{S+e-1}, v{S+e}"))
        if e + 3 < 16: L.append(fma(e + 3))
        if e >= 2: L.append(ad(e - 2))
    L += [ad(14), ad(15)]
    return L, cv

class SM:
    def __init__(self, S):
        self.L, self.cv = softmax_lists(S); self.i = 0; self.c = 0
    def rem(self):
        return sum(cost(t) for t in self.L[self.i:]) + sum(cost(t) for _, t in self.cv[self.c:])
    def next(self, maxcv):
        if self.c < len(self.cv) and self.c < maxcv and (self.cv[self.c][0] <= self.i or self.i >= len(self.L)):
            self.c += 1; return self.cv[self.c - 1][1]
        if self.i < len(self.L):
            self.i += 1; return self.L[self.i - 1]
        return None

def tmax_list(S):
    L = [f"v_max3_f32 v{vT}, v{S}, v{S+1}, v{S+2}", f"v_max3_f32 v13, v{S+3}, v{S+4}, v{S+5}"]
    L += [f"v_max3_f32 v{vT}, v{vT}, v{S+6}, v{S+7}", f"v_max3_f32 v13, v13, v{S+8}, v{S+9}"]
    L += [f"v_max3_f32 v{vT}, v{vT}, v{S+10}, v{S+11}", f"v_max3_f32 v13, v13, v{S+12}, v{S+13}"]
    L += [f"v_max3_f32 v{vT}, v{vT}, v{S+14}, v{S+15}", f"v_max_f32 v{vT}, v{vT}, v13"]
    return L

def op_parts(ks, half, of=OF, wa=WA):
    slot = ks % 2
    rd = []
    def wr(i, dst): return [f"ds_read_b64_tr_b16 {vr(dst+2*jh, 2)}, v{vW} offset:{slot*WOS + i*4352 + jh*512}" for jh in range(2)]
    reg = {0: wa, 1: wa + 4, 2: wa + 8, 3: wa, 4: wa + 4}
    if half == 0:
        rd.append(f"ds_read_b128 {vr(of)}, v{vO} offset:{ks*1024}")
        rd += wr(0, reg[0])
        for qt in (1, 2): rd.append(f"ds_read_b128 {vr(of+4*qt)}, v{vO} offset:{qt*8192 + ks*1024}")
        rd += wr(1, reg[1]) + wr(2, reg[2])
    else:
        rd += wr(3, reg[3]) + wr(4, reg[4])
    allm = [(i, qt) for i in range(5) for qt in range(3)]
    sel = allm[:8] if half == 0 else allm[8:]
    mf = [f"{MF} {ar(16*(3*i+qt))}, {vr(reg[i])}, {vr(of+4*qt)}, {ar(16*(3*i+qt))}" for i, qt in sel]
    regs = f"{vr(of,12)}, {vr(wa,12)}"
    return rd, mf, regs

def round_init(first):
    L = [f"v_mov_b32 v13, v{vT}", f"v_add_f32 v{vR}, v{vL0}, v{vL1}", f"v_permlane32_swap_b32 v13, v{vT}",
         f"v_mov_b32 v{vL0}, 0", f"v_max_f32 v{vM}, v13, v{vT}", f"v_mov_b32 v{vL1}, 0",
         f"v_mul_f32 v{vMc}, s76, v{vM}", f"v_add_f32 v{vThr}, {f32(THR)}, v{vM}", f"v_sub_f32 v{vMc}, 0, v{vMc}"]
    if first: L = [t for t in L if f"v{vR}," not in t]
    return L
RINV = [f"v_mov_b32 v14, v{vR}", f"v_permlane32_swap_b32 v14, v{vR}", f"v_add_f32 v{vR}, v14, v{vR}", f"v_rcp_f32 v{vR}, v{vR}"]

def norm_list():
    out = []
    for dt in range(4):
        o = OA + 16*dt
        L = [f"v_mul_f32 v{o+i}, v{o+i}, v{vR}" for i in range(16)]
        L += [f"v_cvt_pk_bf16_f32 v{o+i}, v{o+2*i}, v{o+2*i+1}" for i in range(8)]
        L += [f"ds_write_b128 v{vOw}, {vr(o+4*a)} offset:{(2*dt+a)*1024}" for a in range(2)]
        out += L
    return out

def interval(p, st, T, tag, stubs, pvb=True, qk=True, op=None, dk="norm", pva=True, c0=False, norm=False, qre=False, cfg={}):
    par = T % 2; Sc = S0 + 16*par; Sn = S0 + 16*(1 - par)
    slot = (T + 1) % 4
    BUD = cfg.get("bud", 24)
    p("s_barrier")
    mfs = []; fixed = {}; pre = {}
    def add(g, t): fixed.setdefault(g, []).append(t)
    if pvb:
        for dt in range(4):
            acc = vr(OA + 16*dt, 16)
            mfs.append(f"{MF} {acc}, {vr(V1+4*dt)}, {vr(PF+4)}, {acc}")
    g0 = 0 if pvb else -1
    nq = len(mfs)
    if qk:
        for m in range(8):
            add(g0 + (m // 4 if pvb else 0), f"ds_read_b128 {vr(KF+4*m)}, v{vA0 if m < 4 else vA1} offset:{slot*KVS + 32*m}")
            mfs.append(f"{MF} {vr(Sn,16)}, {vr(KF+4*m)}, {vr(QA+4*m)}, {vr(Sn,16) if m else 0}")
        pre[nq] = f"WAITFOR {vr(KF,16)}"
        pre[nq + 2] = f"WAITFOR {vr(KF+16,16)}"
    no = len(mfs)
    if op is not None:
        rd, mf, regs = op_parts(*op)
        gs = 2 if qk else 0
        for i, r in enumerate(rd): add(gs + i // 2, r)
        mfs += mf
        pre[no] = f"WAITFOR {regs}"
    nd = len(mfs)
    if pva:
        vr0 = []
        for f, base in ((0, V0), (1, V1)):
            for dt in range(4):
                for jh in range(2):
                    vr0.append(f"ds_read_b64_tr_b16 {vr(base+4*dt+2*jh, 2)}, v{vV} offset:{slot*KVS + VOFF + jh*4352 + f*512 + dt*64}")
        gv = max(nd - 12, 4 if pvb else 0) if op is not None and qk else (4 if pvb else 0)
        if op is not None and qk: gv = 8
        for i, r in enumerate(vr0): add(min(gv + i // 2, nd - 1), r)
        for dt in range(4):
            acc = vr(OA + 16*dt, 16)
            mfs.append(f"{MF} {acc}, {vr(V0+4*dt)}, {vr(PF)}, {0 if c0 else acc}")
        pre[nd] = f"WAITFOR {vr(V0,16)}"
    if qre:
        for m in range(8):
            add(no + m // 2, f"ds_read_b128 {vr(QA+4*m)}, v{vQ} offset:{m*1024}")
    tail_d = []
    if qk:
        tm = tmax_list(Sn)
        if op is not None:
            for i, t in enumerate(tm): add(min(no + 2 + i // 2, nd - 1), t)
            if dk == "norm": add(nd - 1, f"v_cmp_gt_f32 vcc, v{vT}, v{vThr}")
        else:
            tail_d = tm + ([f"v_cmp_gt_f32 vcc, v{vT}, v{vThr}"] if dk == "norm" else [])
    sm = st.get("sm")
    nr = norm_list() if norm else []
    total = (sm.rem() if sm else 0) + sum(cost(t) for t in nr)
    gaps = list(range(g0, nd))
    fx = {g: sum(cost(t) for t in fixed.get(g, [])) + (4 if (g + 1) in pre else 0) for g in gaps}
    B = BUD
    while sum(max(0, B - fx[g]) for g in gaps) < total: B += 1
    ri = 0
    def fill(g, budget, last=False):
        nonlocal ri
        alt = 0
        while budget > 0 or last:
            t = None
            if nr and ri < len(nr) and g >= 2 + ri // 26 and (alt % 3 != 2 or not sm or sm.rem() == 0):
                t = nr[ri]; ri += 1
            elif sm:
                t = sm.next(8 if g >= 3 or not pvb else 4)
            if t is None and nr and ri < len(nr) and (g >= 2 + ri // 26 or last):
                t = nr[ri]; ri += 1
            if t is None: break
            alt += 1
            p(t); budget -= cost(t)
        return budget
    carry = 0
    for g in range(g0, len(mfs)):
        if g >= 0:
            if g == nd:
                fill(g, 0, True)
                for t in tail_d: p(t)
                if dk == "norm":
                    p(f"s_cbranch_vccnz L_rs_{tag}")
                    p.label(f"L_rr_{tag}")
                    stubs.append((f"L_rs_{tag}", f"L_rr_{tag}", Sc))
                elif dk == "round":
                    for t in round_init(False): p(t)
                elif dk == "final":
                    p(f"v_add_f32 v{vR}, v{vL0}, v{vL1}")
                sm = st["sm"] = SM(Sn) if qk else None
                extra = RINV if dk in ("round", "final") else []
                for i, t in enumerate(extra): add(nd + i, t)
            if g in pre: p(pre[g])
            p(mfs[g])
        for t in fixed.get(g, []): p(t)
        if g < nd:
            carry = fill(g, max(0, B - fx[g]) + min(carry, 0))
        elif sm is not None:
            b = BUD - sum(cost(t) for t in fixed.get(g, [])) - (8 if g == len(mfs) - 1 else 0)
            while b > 0:
                t = sm.next(0)
                p(t); b -= cost(t)
    if nd == len(mfs): fill(nd, 0, True)
    p("s_waitcnt lgkmcnt(0)")

def rescale_stub(p, lab, ret, Sc):
    p.label(lab)
    p(f"""
    v_mov_b32 v13, v{vT}
    v_permlane32_swap_b32 v13, v{vT}
    v_max_f32 v13, v13, v{vT}
    v_max_f32 v13, v13, v{vM}
    v_sub_f32 v14, v{vM}, v13
    v_mul_f32 v14, s76, v14
    v_exp_f32 v14, v14
    v_mov_b32 v{vM}, v13
    v_mul_f32 v{vMc}, s76, v13
    v_sub_f32 v{vMc}, 0, v{vMc}
    v_add_f32 v{vThr}, {f32(THR)}, v13
    v_mul_f32 v{vL0}, v{vL0}, v14
    v_mul_f32 v{vL1}, v{vL1}, v14
    """)
    for i in range(16): p(f"v_mul_f32 v{Sc+i}, v{Sc+i}, v14")
    for i in range(8): p(f"v_cvt_pk_bf16_f32 v{PF+i}, v{Sc+2*i}, v{Sc+2*i+1}")
    for i in range(64): p(f"v_mul_f32 v{OA+i}, v{OA+i}, v14")
    p(f"s_nop 1\ns_branch {ret}")

def common_addr(p):
    vread(p, vV, 14)
    p(f"""
    s_lshl_b32 s32, s3, 6
    s_add_u32 s32, s32, {WO0}
    v_add_u32 v{vW}, s32, v{vV}
    v_add_u32 v{vO}, {OBUF}, v0
    """)

def attention(p, cfg):
    stubs = []; st = {}
    p(f"""
    s_lshl_b32 s32, s3, 13
    s_add_u32 s32, s32, {QT0}
    v_add_u32 v13, s32, v0
    """)
    for m in range(8): p(f"ds_read_b128 {vr(QA+4*m)}, v13 offset:{m*1024}")
    kread(p, vA0, vA1, 14)
    for m in range(8): p(f"ds_read_b128 {vr(KF+4*m)}, v{vA0 if m < 4 else vA1} offset:{32*m}")
    common_addr(p)
    p(f"""
    s_lshl_b32 s32, s3, 13
    v_add_u32 v{vOw}, s32, v{vO}
    v_add_u32 v{vQ}, {(QBUF - OBUF) & 0xffffffff}, v{vOw}
    """)
    for m in range(8): p(f"{MF} {vr(S0,16)}, {vr(KF+4*m)}, {vr(QA+4*m)}, {vr(S0,16) if m else 0}")
    for t in tmax_list(S0): p(t)
    for t in round_init(True): p(t)
    st["sm"] = SM(S0)
    p("s_mov_b32 s80, 1")
    stamp(p, 3, cfg)
    stamp(p, 11, cfg, True)
    nc = cfg.get("nocompute")
    def iv(*a, **k):
        if nc: p("s_barrier")
        else: interval(*a, **k, cfg=cfg)
    for T in range(17):
        iv(p, st, T, f"a{T}", stubs, pvb=T > 0, dk="round" if T == 15 else "norm", c0=T in (0, 16), norm=T == 16, qre=T == 14)
    stamp(p, 7, cfg)
    sm_entry = (st["sm"].i, st["sm"].c)
    p.label("L_r1")
    for t in range(1, 17):
        if t == 15:
            p("s_cmp_eq_u32 s80, 3\ns_cbranch_scc1 L_final")
            import copy
            st_final = {"sm": copy.deepcopy(st["sm"])}
        iv(p, st, t, f"b{t}", stubs, op=((t - 1) // 2, (t - 1) % 2), dk="round" if t == 15 else "norm", c0=t == 16, norm=t == 16, qre=t == 14)
    assert nc or sm_entry == (st["sm"].i, st["sm"].c), (sm_entry, st["sm"].i, st["sm"].c)
    k1.rstamp(p, 7, cfg, "s80", 3, "re")
    p("""
    s_add_u32 s80, s80, 1
    s_branch L_r1
    """)
    for lab, ret, Sc in stubs: rescale_stub(p, lab, ret, Sc)
    p.label("L_final")
    iv(p, st_final, 15, "f15", stubs, qk=False, op=(7, 0), dk="final")
    iv(p, st_final, 16, "f16", stubs, qk=False, op=(7, 1), dk=None, pva=False, norm=True)
    stamp(p, 10, cfg)

USLOT = list(range(26, 32)) + list(range(4, 20)) + list(range(0, 4)) + list(range(20, 26))
USLOT = USLOT + USLOT[:8]
def unit_piece(u, q, cfg):
    blk, ks = u // 8, u % 8
    return (f"s_mov_b32 m0, {USLOT[u]*4352 + q*1088}\ns_mov_b32 s75, {(384 + ks*16 + q)*1280 + blk*256}\n"
            f"buffer_load_dwordx4 v14, s[24:27], s75 offen{cfg.get('wpol','')} lds")

def wodma_addr(p, d, t):
    p(f"""
    v_lshrrev_b32 v{t}, 8, v0
    v_mul_u32_u24 v{d}, 5120, v{t}
    v_and_b32 v{t}, 0xf0, v0
    v_add_u32 v{d}, v{d}, v{t}
    """)

def loader(p, cfg):
    WP = cfg.get("wpol", "")
    vm = VM(p)
    def kv_list(slot):
        L = []
        for q in range(8):
            L.append(f"s_mov_b32 m0, {slot*KVS + q*1040 - (q % 4)*1024}\ns_nop 0\nbuffer_load_dwordx4 v6, s[8:11], s{81 + q//4} offen offset:{(q % 4)*1024} nt lds")
        for q in range(8):
            L.append(f"s_mov_b32 m0, {slot*KVS + VOFF + q*1088 - (q % 4)*1024}\ns_nop 0\nbuffer_load_dwordx4 v0, s[12:15], s{78 + q//4} offen offset:{(q % 4)*1024} nt lds")
        L[-1] += "\ns_mov_b32 s78, s81\ns_mov_b32 s79, s82\ns_add_u32 s81, s81, 8192\ns_add_u32 s82, s82, 8192"
        return L
    def wo_list(slot):
        L = []
        for q in range(4):
            for blk in range(5):
                pre = f"s_add_u32 s75, s83, {q*1280}" if blk == 0 else "s_nop 0"
                L.append(f"s_mov_b32 m0, {WO0 + slot*WOS + blk*4352 + q*1088 - blk*256}\n{pre}\nbuffer_load_dwordx4 v14, s[24:27], s75 offen offset:{blk*256}{WP} lds")
        L[-1] += "\ns_add_u32 s83, s83, 20480"
        return L
    common_addr(p)
    wodma_addr(p, 14, 13)
    p(f"""
    v_add_u32 v12, {QBUF}, v0
    s_mov_b32 s78, {3*8192}
    s_mov_b32 s79, {3*8192 + 4096}
    s_mov_b32 s81, {4*8192}
    s_mov_b32 s82, {4*8192 + 4096}
    s_mov_b32 s83, 0
    s_barrier
    """)
    for dt in range(4):
        for qt in range(3):
            a = 64 + 16*(dt*3 + qt) + 8
            for h in range(2):
                p(f"ds_read_b128 {vr(a+4*h)}, v{vO} offset:{qt*8192 + (2*dt+h)*1024}")
    p("s_waitcnt lgkmcnt(0)")
    def emit(dl, rd, mf):
        for r in rd: p(r)
        k = 0
        n = len(dl)
        for i, (t, tag) in enumerate(dl):
            if tag is not None:
                vm.cap(1); vm.issue(tag)
            p(t)
            while k < len(mf) and (i + 1) * (len(mf) + 2) >= (k + 3) * n:
                p(mf[k]); k += 1
        while k < len(mf): p(mf[k]); k += 1
    for T in range(17):
        vm.wait(("kv", T))
        p("s_barrier")
        dl = []
        if T == 15: dl += [(t, ("wo", 8)) for t in wo_list(0)]
        dl += [(t, ("kv", T + 3)) for t in kv_list(T % 4)]
        emit(dl, [], [])
        if T == 16:
            qwrite(p, 12, 1)
            p("s_waitcnt lgkmcnt(0)")
    p("s_mov_b32 s80, 1")
    p.label("L_ld")
    for t in range(1, 17):
        p(f"s_waitcnt vmcnt({32 if t % 2 == 1 else 52})")
        p("s_barrier")
        rd, mf, _ = op_parts((t - 1) // 2, (t - 1) % 2)
        dl = []
        if t % 2 == 1:
            dl += [(x, None) for x in wo_list(((t + 1) // 2) % 2)]
            dl[-1] = (dl[-1][0] + "\ns_waitcnt vmcnt(46)", None)
        dl += [(x, None) for x in kv_list(t % 4)]
        if t % 2 == 0: dl[10] = (dl[10][0] + "\ns_waitcnt vmcnt(58)", None)
        emit(dl, rd, mf)
        if t == 16:
            qwrite(p, 12, 0)
            p("s_waitcnt lgkmcnt(0)")
    p("""
    s_add_u32 s80, s80, 1
    s_cmp_lt_u32 s80, 3
    s_cbranch_scc1 L_ld
    """)
    vm.q = [("kv", 49)]*16 + [("wo", 24)]*20 + [("kv", 50)]*16 + [("kv", 51)]*16
    vm.q = vm.q[-63:]
    units = {61: range(0, 9), 62: range(9, 13), 63: range(13, 22), 64: range(22, 26)}
    for t in range(1, 17):
        T = 48 + t
        vm.wait(("kv", T), ("wo", (T - 1) // 2) if T % 2 else None)
        p("s_barrier")
        rd, mf, _ = op_parts((t - 1) // 2, (t - 1) % 2)
        dl = []
        if t % 2 == 1 and (T + 1) // 2 < 32:
            dl += [(x, ("wo", (T + 1) // 2)) for x in wo_list(((t + 1) // 2) % 2)]
        if T + 3 <= 63:
            kl = kv_list(t % 4)
            if T + 3 == 63: kl = kl[8:]
            dl += [(x, ("kv", T + 3)) for x in kl]
        for u in units.get(T, []):
            dl += [(unit_piece(u, q, cfg), "u") for q in range(4)]
        emit(dl, rd, mf)
    p("s_waitcnt vmcnt(0) lgkmcnt(0)")

def tail(p, cfg):
    SP = cfg.get("spol", " sc1"); WP = cfg.get("wpol", "")
    TO = 64; TW = 16; TS = 160
    wodma_addr(p, 14, 13)
    p(f"""
    v_add_u32 v1, {(-WO0) & 0xffffffff}, v{vW}
    v_add_u32 v2, {(-WO0 + 47872) & 0xffffffff}, v{vW}
    v_add_u32 v3, {(-WO0 + 2*47872) & 0xffffffff}, v{vW}
    s_mul_i32 s34, s3, 1088
    s_mul_i32 s35, s3, 1280
    s_lshl_b32 s33, s3, 11
    s_barrier
    """)
    stamp(p, 4, cfg)
    stamp(p, 12, cfg, True)
    def dma(u):
        blk, ks = u // 8, u % 8
        return (f"s_add_u32 m0, s34, {USLOT[u]*4352}\ns_add_u32 s75, s35, {(384 + ks*16)*1280 + blk*256}\n"
                f"buffer_load_dwordx4 v14, s[24:27], s75 offen{WP} lds")
    def wrd(u):
        k = USLOT[u]; dst = TW + 4*(u % 8)
        return [f"ds_read_b64_tr_b16 {vr(dst+2*jh,2)}, v{1 + k//11} offset:{(k % 11)*4352 + jh*512}" for jh in range(2)]
    def store_list(blk):
        L = []
        for qt in range(3):
            t = TS + 16*qt; a = 16*(3*blk + qt)
            L += [f"v_accvgpr_read_b32 v{t+i}, a{a+i}" for i in range(16)]
            L += [f"v_cvt_pk_bf16_f32 v{t+i}, v{t+2*i}, v{t+2*i+1}" for i in range(8)]
            L += [f"s_add_u32 s75, s33, {(qt*20 + 4*blk)*2048}",
                  f"buffer_store_dwordx4 {vr(t)}, v0, s[28:31], s75 offen{SP}",
                  f"buffer_store_dwordx4 {vr(t+4)}, v0, s[28:31], s75 offen offset:1024{SP}"]
        return L
    for ks in range(2):
        for qt in range(3): p(f"ds_read_b128 {vr(TO+12*ks+4*qt)}, v{vO} offset:{qt*8192 + ks*1024}")
        for r in wrd(ks): p(r)
    vm = VM(p)
    for u in range(26, 32): p(dma(u)); vm.issue("u")
    AH = 2
    for blk in range(5):
        fl = store_list(blk - 1) if blk else []
        k = 0
        if blk == 3:
            pass
        for ks in range(8):
            u = 8*blk + ks
            nxt = []
            if blk == 0 and ks + AH < 8:
                nxt += [f"ds_read_b128 {vr(TO+12*(ks+AH)+4*qt)}, v{vO} offset:{qt*8192 + (ks+AH)*1024}" for qt in range(3)]
            if u + AH < 40:
                if u + AH == 24:
                    nxt.append("BT2")
                nxt += wrd(u + AH)
            for qt in range(3):
                acc = ar(16*(3*blk + qt))
                p(f"{MF} {acc}, {vr(TW+4*(u%8))}, {vr(TO+12*ks+4*qt)}, {acc}")
                for t in nxt[2*qt:2*qt+2]:
                    if t == "BT2":
                        vm.wait("u"); p("s_barrier")
                    else: p(t)
                if blk and (ks > 0 or qt > 1):
                    for _ in range(4):
                        if k < len(fl):
                            p(fl[k])
                            if fl[k].startswith("buffer_store"): vm.issue("st")
                            k += 1
            if blk == 0 and ks == 5:
                p("s_waitcnt lgkmcnt(0)\ns_barrier")
                for uu in range(32, 40): p(dma(uu)); vm.issue("u")
        while k < len(fl):
            p(fl[k])
            if fl[k].startswith("buffer_store"): vm.issue("st")
            k += 1
    stamp(p, 5, cfg)
    for t in store_list(4): p(t)
    p("s_waitcnt vmcnt(0)\ns_barrier")
    stamp(p, 6, cfg)
    p(f"""
    s_lshl_b32 s32, s6, 4
    s_add_u32 s32, s32, s5
    s_lshl_b32 s34, s32, 3
    s_add_u32 s58, s58, s34
    s_addc_u32 s59, s59, 0
    s_cmp_eq_u32 s3, 0
    s_cbranch_scc0 L_pollend
    v_mov_b32 v1, 0
    v_mov_b32 v2, 1
    s_mov_b64 exec, 1
    global_atomic_add v1, v2, s[58:59] sc1
    s_mov_b32 s35, 0x20000
    """)
    p.label("L_poll")
    p("""
    global_load_dword v3, v1, s[58:59] sc1
    s_waitcnt vmcnt(0)
    v_readfirstlane_b32 s34, v3
    s_sub_u32 s35, s35, 1
    s_cselect_b32 s34, 8, s34
    s_cmp_lt_u32 s34, 8
    s_cbranch_scc1 L_poll
    s_mov_b64 exec, -1
    """)
    p.label("L_pollend")
    p("s_barrier")
    stamp(p, 14, cfg)
    p(f"""
    s_lshl_b32 s34, s4, 3
    s_lshl_b32 s35, s3, 1
    s_add_u32 s34, s34, s35
    s_cmp_ge_u32 s34, 60
    s_cbranch_scc1 L_done
    s_mul_i32 s35, s4, 122880
    s_sub_u32 s28, s28, s35
    s_subb_u32 s29, s29, 0
    s_mov_b32 s30, 983040
    s_lshl_b32 s75, s34, 11
    """)
    LP = cfg.get("lpol", " sc1")
    for g in range(8):
        for i in range(4):
            p(f"buffer_load_dwordx4 {vr(64+16*g+4*i)}, v0, s[28:31], s75 offen offset:{i*1024}{LP}")
        if g < 7: p("s_add_u32 s75, s75, 122880")
    p("""
    s_mul_i32 s35, s34, 13
    s_lshr_b32 s35, s35, 8
    s_mul_i32 s33, s35, 20
    s_sub_u32 s33, s34, s33
    s_mul_i32 s75, s5, 96
    s_lshl_b32 s35, s35, 5
    s_add_u32 s75, s75, s35
    s_mul_i32 s75, s75, 2560
    s_mul_i32 s35, s6, 1280
    s_add_u32 s75, s75, s35
    s_lshl_b32 s33, s33, 6
    s_add_u32 s75, s75, s33
    s_mov_b32 s58, 3932160
    s_mov_b32 s59, 0x20000
    v_lshrrev_b32 v7, 4, v0
    v_bfe_u32 v2, v7, 3, 1
    v_lshlrev_b32 v2, 4, v2
    v_and_b32 v3, 3, v7
    v_lshlrev_b32 v3, 2, v3
    v_add_u32 v2, v2, v3
    v_bfe_u32 v3, v7, 4, 1
    v_lshlrev_b32 v3, 1, v3
    v_add_u32 v2, v2, v3
    v_bfe_u32 v3, v7, 2, 1
    v_add_u32 v2, v2, v3
    v_mul_u32_u24 v2, 2560, v2
    v_lshrrev_b32 v3, 5, v7
    v_lshlrev_b32 v3, 4, v3
    v_add_u32 v2, v2, v3
    """)
    A = 16
    for g in range(8):
        p(f"s_waitcnt vmcnt({28 - 4*g})")
        for i in range(16):
            s = 64 + 16*g + i
            if g == 0:
                p(f"v_lshlrev_b32 v{A+2*i}, 16, v{s}\nv_and_b32 v{A+2*i+1}, 0xffff0000, v{s}")
            else:
                p(f"v_lshlrev_b32 v4, 16, v{s}\nv_and_b32 v5, 0xffff0000, v{s}")
                p(f"v_add_f32 v{A+2*i}, v{A+2*i}, v4\nv_add_f32 v{A+2*i+1}, v{A+2*i+1}, v5")
    for i in range(16): p(f"v_cvt_pk_bf16_f32 v{64+i}, v{A+2*i}, v{A+2*i+1}")
    for i in range(4):
        p(f"v_permlane32_swap_b32 v{64+4*i}, v{66+4*i}\nv_permlane32_swap_b32 v{65+4*i}, v{67+4*i}")
    p("s_nop 1")
    for i in range(4):
        p(f"buffer_store_dwordx4 {vr(64+4*i)}, v2, s[56:59], s75 offen offset:{32*i}{cfg.get('opol','')}")
    p.label("L_done")
    if cfg.get("stamps"):
        p("s_waitcnt vmcnt(0)")
        stamp(p, 15, cfg)
        p(f"""
        s_cmp_eq_u32 s3, {cfg.get('stampwave', 0)}
        s_cbranch_scc0 L_exit
        s_load_dwordx2 s[56:57], s[0:1], 96
        s_lshl_b32 s32, s2, 9
        s_waitcnt lgkmcnt(0)
        s_add_u32 s56, s56, s32
        s_addc_u32 s57, s57, 0
        s_add_u32 s56, s56, {WS - 256*512}
        s_addc_u32 s57, s57, 0
        v_mov_b32 v14, 0
        """)
        for j in range(len(SREG)):
            p(f"v_mov_b32 v10, s{SREG[j]}\nv_mov_b32 v11, s{SREG[j]+1}\nglobal_store_dwordx2 v14, v[10:11], s[56:57] offset:{8*j}\ns_nop 1")

def gen(cfg):
    p = Prog()
    setup(p, cfg)
    prologue(p, cfg)
    attention(p, cfg)
    p("s_branch L_tail")
    p.label("L_loader")
    p("s_nop 7\ns_nop 7")
    loader(p, cfg)
    p.label("L_tail")
    p("s_nop 7\ns_nop 7")
    tail(p, cfg)
    p.label("L_exit")
    p("s_endpgm")
    return single_file(p.text(), 256, 256, 163840)

if __name__ == "__main__":
    open("out/k2.s", "w").write(gen({}))
    open("out/k2s.s", "w").write(gen({"stamps": 1}))
    open("out/k2_nc.s", "w").write(gen({"stamps": 1, "nocompute": 1}))
    open("out/k2_nm.s", "w").write(gen({"stamps": 1, "nomem": 1}))
```
